```python
import torch

def _softmax(x, axis=-1):
    return torch.softmax(x, dim=axis)
def _gelu(x):
    return torch.nn.functional.gelu(x, approximate="tanh")
def _silu(x):
    return torch.nn.functional.silu(x)
def _sigmoid(x):
    return torch.sigmoid(x)
def _layernorm(x, axis=-1, eps=1e-5):
    m = x.mean(dim=axis, keepdim=True)
    v = x.var(dim=axis, keepdim=True, unbiased=False)
    return (x - m) / torch.sqrt(v + eps)
def _scatter_add(tgt, idx, src, axis=0):
    return tgt.clone().index_add_(axis, idx, src)
def _segment_sum(src, seg, n):
    out = torch.zeros((n,) + src.shape[1:], dtype=src.dtype)
    return out.index_add_(0, seg, src)
def _pad(x, pw):
    flat = tuple(v for pair in reversed(pw) for v in pair)
    return torch.nn.functional.pad(x, flat)

kernel_name = 'standalone__gqa_softmax__near_ridge'

def setup_inputs():

    _w = (lambda a: (lambda t: t.to(torch.bfloat16) if t.is_floating_point() else t)(torch.as_tensor(a)))
    B, Hq, Hkv, Sq, Sk, D = 8, 16, 8, 384, 512, 256
    return {
        "q": _w((lambda *s: torch.randn(*s, dtype=torch.bfloat16) * 0.8)(B, Hq, Sq, D)),
        "k": _w((lambda *s: torch.randn(*s, dtype=torch.bfloat16) * 0.8)(B, Hkv, Sk, D)),
        "v": _w((lambda *s: torch.randn(*s, dtype=torch.bfloat16) * 0.05)(B, Hkv, Sk, D)),
    }

def reference(q, k, v):
    B, Hq, Sq, D = q.shape
    Hkv = k.shape[1]
    rep = Hq // Hkv
    k = (lambda x, n, axis: torch.repeat_interleave(x, n, dim=axis))(k, rep, axis=1)
    v = (lambda x, n, axis: torch.repeat_interleave(x, n, dim=axis))(v, rep, axis=1)
    scale = D ** -0.5
    scores = torch.einsum("bhqd,bhkd->bhqk", q, k) * scale
    p = _softmax(scores, axis=-1)
    return torch.einsum("bhqk,bhkd->bhqd", p, v)
```

```python
class R:
    __slots__ = ('f', 'lo', 'n')

    def __init__(self, f, lo, n=1):
        self.f, self.lo, self.n = f, lo, n

    def __str__(self):
        return f"{self.f}{self.lo}" if self.n == 1 else f"{self.f}[{self.lo}:{self.lo + self.n - 1}]"

    def regs(self):
        return [f"{self.f}{i}" for i in range(self.lo, self.lo + self.n)]

    def sub(self, off, n=1):
        assert off + n <= self.n
        return R(self.f, self.lo + off, n)

    def __getitem__(self, i):
        return self.sub(i, 1)


def V(lo, n=1): return R('v', lo, n)
def A(lo, n=1): return R('a', lo, n)
def S(lo, n=1): return R('s', lo, n)


def _regs(xs):
    out = []
    for x in xs:
        if isinstance(x, R):
            out += x.regs()
        elif isinstance(x, str):
            out.append(x)
    return out


class Inst:
    def __init__(self, text, kind, rd=(), wr=(), cost=4, **kw):
        self.text = text
        self.kind = kind
        self.rd = _regs(rd)
        self.wr = _regs(wr)
        self.cost = cost
        self.srcc = []
        self.ab = []
        self.pre_lgkm = None
        self.pre_vm = None
        self.pre_nop = 0
        self.extra_wait = []
        self.tag = None
        self.wait_tags = None
        self.wait_lgkm0 = False
        self.store_data = []
        self.perm = False
        self.rfl = False
        self.dma = False
        self.name = None
        self.comment = None
        for k, v in kw.items():
            setattr(self, k, v)


def mfma(D, Aop, Bop, C, name=None):
    ctext = str(C) if isinstance(C, R) else str(C)
    i = Inst(f"v_mfma_f32_32x32x16_bf16 {D}, {Aop}, {Bop}, {ctext}", 'mfma',
             rd=[Aop, Bop] + ([C] if isinstance(C, R) else []), wr=[D], cost=8)
    i.srcc = C.regs() if isinstance(C, R) else []
    i.ab = Aop.regs() + Bop.regs()
    i.name = name
    return i


def valu(op, dst, *srcs, trans=False, extra_rd=(), extra_wr=()):
    ops = ", ".join(str(x) for x in (dst,) + srcs)
    rd = [x for x in srcs if isinstance(x, R) or x in ('vcc',)] + list(extra_rd)
    wr = [dst] + list(extra_wr)
    return Inst(f"{op} {ops}", 'trans' if trans else 'valu', rd=rd, wr=wr, cost=8 if trans else 4)


def salu(text, rd=(), wr=()):
    return Inst(text, 'salu', rd=rd, wr=wr)


def raw(text, kind='salu', rd=(), wr=(), **kw):
    return Inst(text, kind, rd=rd, wr=wr, **kw)


def label(name):
    return Inst(f"{name}:", 'label', cost=0)


def ds_read(op, dst, addr, off):
    assert 0 <= off < 65536, off
    return Inst(f"{op} {dst}, {addr} offset:{off}", 'lds', rd=[addr], wr=[dst])


def ds_write(op, addr, src, off):
    assert 0 <= off < 65536, off
    i = Inst(f"{op} {addr}, {src} offset:{off}", 'lds', rd=[addr, src], wr=[])
    return i


def wait(tags=None, lgkm0=False, vm0=False):
    i = Inst("", 'wait')
    i.wait_tags = tags
    i.wait_lgkm0 = lgkm0
    i.vm0 = vm0
    i.res_vm = None
    return i


def barrier():
    return Inst("s_barrier", 'barrier')


def nop(n):
    i = Inst(f"s_nop {n}", 'nop')
    i.nstates = n + 1
    return i


VALU_KINDS = ('valu', 'trans')


def analyze(dyn, verbose=True):
    lq = []
    vq = []
    for ins in dyn:
        if ins.kind == 'label':
            continue
        need = set(ins.rd) | set(ins.wr) | set(_regs(ins.extra_wait))
        if ins.kind == 'wait':
            if ins.wait_lgkm0:
                lq = []
            if ins.vm0:
                vq = []
                ins.res_vm = 0
            elif ins.wait_tags:
                last = -1
                for k, (d, t) in enumerate(vq):
                    if t in ins.wait_tags:
                        last = k
                n = len(vq) - 1 - last
                if last >= 0:
                    n = min(n, 63)
                    ins.res_vm = n if ins.res_vm is None else min(ins.res_vm, n)
                    vq = vq[len(vq) - n:] if n else []
            continue
        last = -1
        for k, d in enumerate(lq):
            if d & need:
                last = k
        if last >= 0:
            n = min(len(lq) - 1 - last, 15)
            ins.pre_lgkm = n if ins.pre_lgkm is None else min(ins.pre_lgkm, n)
        if ins.pre_lgkm is not None:
            n = ins.pre_lgkm
            if len(lq) > n:
                lq = lq[len(lq) - n:] if n else []
        last = -1
        for k, (d, t) in enumerate(vq):
            if d & need:
                last = k
        if last >= 0:
            n = min(len(vq) - 1 - last, 63)
            ins.pre_vm = n if ins.pre_vm is None else min(ins.pre_vm, n)
        if ins.pre_vm is not None:
            n = ins.pre_vm
            if len(vq) > n:
                vq = vq[len(vq) - n:] if n else []
        if ins.kind == 'lds':
            if len(lq) >= 15:
                ins.pre_lgkm = 14 if ins.pre_lgkm is None else min(ins.pre_lgkm, 14)
                lq = lq[len(lq) - 14:]
            lq.append(set(ins.wr))
        elif ins.kind == 'vmem':
            vq.append((set(ins.wr), ins.tag))
    hist = []
    warn = {}

    def states(i):
        n = i.pre_nop
        if i.pre_lgkm is not None or i.pre_vm is not None:
            n += 1
        if i.kind == 'label':
            return n
        if i.kind == 'wait':
            return n + (1 if (i.wait_lgkm0 or i.res_vm is not None) else 0)
        if i.kind == 'nop':
            return n + i.nstates
        return n + 1

    for idx, ins in enumerate(dyn):
        if ins.kind in ('label', 'wait', 'nop', 'barrier'):
            hist.append(ins)
            continue
        rd, wr = set(ins.rd), set(ins.wr)
        dist = ins.pre_nop + (1 if (ins.pre_lgkm is not None or ins.pre_vm is not None) else 0)
        needn = 0
        why = None
        for p in reversed(hist[-40:]):
            if dist >= 20:
                break
            req = 0
            pw = set(p.wr)
            if p.kind in VALU_KINDS:
                if ins.kind == 'mfma' and pw & rd:
                    req = max(req, 2)
                if ins.perm and pw & (rd | wr):
                    req = max(req, 2)
                if ins.rfl and pw & rd:
                    req = max(req, 1)
                if p.kind == 'trans' and ins.kind == 'valu' and pw & rd:
                    req = max(req, 1)
                if p.kind == 'trans' and ins.kind in ('lds', 'vmem') and pw & rd:
                    req = max(req, 1)
                sw = {x for x in pw if x[0] == 's' or x == 'vcc'}
                if sw & rd:
                    if ins.kind in VALU_KINDS:
                        req = max(req, 2)
                    if ins.kind == 'vmem':
                        req = max(req, 5)
                    if ins.kind == 'salu':
                        req = max(req, 1)
            if p.kind == 'mfma':
                if ins.kind in VALU_KINDS or ins.kind in ('lds', 'vmem'):
                    if pw & (rd | wr):
                        req = max(req, 12)
                if ins.kind == 'mfma':
                    if pw & set(ins.ab):
                        req = max(req, 12)
                    if pw & set(ins.srcc) and list(p.wr) != list(ins.srcc):
                        req = max(req, 10)
                    if pw & wr and not (pw & set(ins.srcc)):
                        req = max(req, 10)
                if ins.kind in VALU_KINDS and set(p.srcc) & wr:
                    req = max(req, 7)
            if p.kind == 'salu' and 'm0' in pw and ins.dma:
                req = max(req, 1)
            if p.store_data and set(p.store_data) & wr:
                req = max(req, 2)
            if req > dist and req - dist > needn:
                needn = req - dist
                why = p.text
            dist += states(p)
        if needn:
            ins.pre_nop += needn
            warn[id(ins)] = (ins.text, ins.pre_nop, why)
        hist.append(ins)
    if verbose:
        seen = set()
        for t in warn.values():
            if t not in seen and not (t[0].endswith('lds') and verbose < 2):
                print("NOP inserted:", t)
            seen.add(t)


def emit(block):
    out = []
    for i in block:
        if i.pre_lgkm is not None or i.pre_vm is not None:
            w = []
            if i.pre_vm is not None:
                w.append(f"vmcnt({i.pre_vm})")
            if i.pre_lgkm is not None:
                w.append(f"lgkmcnt({i.pre_lgkm})")
            out.append("    s_waitcnt " + " ".join(w))
        n = i.pre_nop
        while n > 0:
            k = min(n, 16)
            out.append(f"    s_nop {k - 1}")
            n -= k
        if i.kind == 'wait':
            w = []
            if i.res_vm is not None:
                w.append(f"vmcnt({i.res_vm})")
            if i.wait_lgkm0:
                w.append("lgkmcnt(0)")
            if w:
                out.append("    s_waitcnt " + " ".join(w))
        elif i.kind == 'label':
            out.append(i.text)
        else:
            out.append("    " + i.text + (f"   ; {i.comment}" if i.comment else ""))
    return "\n".join(out)
```

```python
import sys, math, struct
from fw import *

KNAME = "standalone__gqa_softmax__near_ridge_kernel"
PIECE = 1040
HALF = 16 * PIECE
TILE = 32 * PIECE
KBUF = [0, TILE]
VBUF = [2 * TILE, 3 * TILE]
LDS_BYTES = 4 * TILE
CSCALE = math.log2(math.e) / 16.0
THR = 8.0 / CSCALE
NSTEP = 8

opts = dict(cap=20, dist=6, bS=89, bM=41)
for a in sys.argv[2:]:
    k, v = a.split('=')
    opts[k] = int(v)


def f32(x):
    return "0x%08x" % struct.unpack('<I', struct.pack('<f', x))[0]


vKX, vKY = V(1), V(2)
vVXl, vVXh, vVYl, vVYh = V(3), V(4), V(5), V(6)
vDMA0, vDMA1 = V(7), V(8)
vNEG = {'A': V(9), 'B': V(10)}
vTHR = {'A': V(11), 'B': V(12)}
vL = {'A': V(13), 'B': V(14)}
vAL = {'A': V(15), 'B': V(16)}
vMX = {'A': V(17), 'B': V(18)}
vT0, vT1 = V(19), V(20)
vQOFF = V(21)
vQOFFB = V(22)
vLANE16 = V(23)
sAX, sB, sAY = V(24, 16), V(40, 16), V(56, 16)
pAX, pB, pAY = V(72, 8), V(80, 8), V(88, 8)
FR = [V(96 + 4 * i, 4) for i in range(8)]
OA = [V(128 + 16 * i, 16) for i in range(8)]
OB = [A(16 * i, 16) for i in range(8)]
QA = [A(128 + 4 * i, 4) for i in range(16)]
QB = [A(192 + 4 * i, 4) for i in range(16)]
sQ, sK, sV, sO = S(4, 4), S(8, 4), S(12, 4), S(16, 4)
sC = S(20)
sIT = S(21)
sKOFF, sVOFF = S(22), S(23)
sKM0, sVM0 = S(24), S(25)
sDELTA = S(26)
sFLAG = S(27)
sW, sP = S(28), S(29)
sT = [S(32 + i) for i in range(8)]


def dma(kind, j, tag):
    base, srd, off = (sKM0, sK, sKOFF) if kind == 'K' else (sVM0, sV, sVOFF)
    m0 = salu(f"s_add_u32 m0, {base}, {j * PIECE - (j % 4) * 1024 + 0}", rd=[base], wr=['m0', 'scc'])
    voff = vDMA0 if j < 4 else vDMA1
    ld = Inst(f"buffer_load_dwordx4 {voff}, {srd}, {off} offen offset:{(j % 4) * 1024} lds", 'vmem',
              rd=[voff, srd, off, 'm0'], wr=[], dma=True, tag=tag, cost=8)
    return [m0, ld]


class Body:
    def __init__(self, name, qk, pv, head, tail, next_qk, dmaV, dmaK, first=False):
        self.name = name
        mf = []
        frags = []
        idx = {}

        def add(m, key):
            idx[key] = len(mf)
            mf.append(m)

        fcount = [0]

        def newfrag(kind, *args):
            f = fcount[0]
            fcount[0] += 1
            frags.append([kind, args, len(mf), None])
            return FR[f % 8], f

        if qk:
            for s in range(16):
                fr, f = newfrag('K', vKX, s)
                add(mfma(sAX, fr, QA[s], sAX if s else 0), ('qkxa', s))
                add(mfma(sB, fr, QB[s], sB if s else 0), ('qkxb', s))
                frags[f][3] = len(mf) - 1
            for s in range(16):
                fr, f = newfrag('K', vKY, s)
                add(mfma(sAY, fr, QA[s], sAY if s else 0), ('qky', s))
                frags[f][3] = len(mf) - 1
        nkf = fcount[0]
        if pv:
            for t in range(2):
                for dt in range(8):
                    fr, f = newfrag('V', vVXl if dt < 4 else vVXh, t, dt)
                    add(mfma(OA[dt], fr, pAX.sub(4 * t, 4), OA[dt]), ('pvxa', t, dt))
                    add(mfma(OB[dt], fr, pB.sub(4 * t, 4), OB[dt]), ('pvxb', t, dt))
                    frags[f][3] = len(mf) - 1
            for t in range(2):
                for dt in range(8):
                    fr, f = newfrag('V', vVYl if dt < 4 else vVYh, t, dt)
                    add(mfma(OA[dt], fr, pAY.sub(4 * t, 4), OA[dt]), ('pvy', t, dt))
                    frags[f][3] = len(mf) - 1
        nf = fcount[0]
        assert nf % 8 == 0
        NM = len(mf)
        self.NM = NM
        gaps = {g: [] for g in range(-1, NM)}
        DIST = opts['dist']

        def fragreads(kind, args, fr):
            if kind == 'K':
                a, s = args
                return [ds_read("ds_read_b128", fr, a, 32 * s)]
            a, t, dt = args
            return [ds_read("ds_read_b64_tr_b16", fr.sub(2 * e, 2), a, PIECE * (2 * t + e) + 64 * dt) for e in range(2)]

        NPRE = 4
        gM = None
        if pv:
            first_v = frags[nkf][2]
            gM = (first_v - (48 - opts['bM'])) if qk else -1
        elif qk:
            gM = NM - 1
        gS = NM - (96 - opts['bS']) if pv else NM - 1
        for f, (kind, args, fu, lu) in enumerate(frags):
            if f < NPRE and qk and not first:
                continue
            g = fu - DIST
            if f >= 8:
                g = max(g, frags[f - 8][3])
            g = max(g, -1)
            if kind == 'K':
                g = min(g, gM - 2) if f >= 8 and gM - 2 >= frags[f - 8][3] else g
                assert g < gM or not pv, (f, g, gM)
            if kind == 'V':
                g = max(g, gM)
                if next_qk or True:
                    lim = gS - 2
                    if g > lim:
                        g = max(lim, frags[f - 8][3] if f >= 8 else -1)
                    assert g < gS or g == -1, (f, g, gS)
            gaps[g].append(('lds', f, fragreads(kind, args, FR[f % 8])))
        for f, (kind, args, fu, lu) in enumerate(frags):
            if fu == lu and f % 2 == 0 and f + 1 < nf and frags[f + 1][0] == kind:
                mf[fu].extra_wait = [FR[(f + 1) % 8]]
        pre = {g: [] for g in range(-1, NM)}
        post = {g: [] for g in range(-1, NM)}
        final = []
        if gM is not None:
            if qk:
                pre[gM] += [wait(tags=['Vcur'] if pv else None, lgkm0=True), barrier()]
            else:
                pre[gM] += [wait(vm0=True, lgkm0=True), barrier()]
        if qk:
            pre[gM] += [valu("v_add_u32", vKX, sDELTA, vKX), valu("v_add_u32", vKY, sDELTA, vKY)]
        if next_qk is not None:
            sb = [wait(tags=['Knext'] if next_qk else None, lgkm0=True), barrier()]
            if pv:
                pre[gS] += sb
                post[gS] += [valu("v_subrev_u32", a, sDELTA, a) for a in (vVXl, vVXh, vVYl, vVYh)]
            else:
                final += sb
            if next_qk:
                for f in range(NPRE):
                    if not pv:
                        final += fragreads('K', (vKX, f), FR[f])
                        continue
                    g = gS
                    fb = nf - 8 + f
                    if fb >= 0:
                        g = max(g, frags[fb][3])
                    g = min(max(g, gS + f), NM - 1)
                    gaps[g].append(('lds', 1000 + f, fragreads('K', (vKX, f), FR[f])))
        self.retag = []
        if dmaV:
            for j in range(8):
                g = min(0 + 2 * j, NM - 1)
                post[g] += dma('V', j, 'Vnew')
            post[min(16, NM - 1)] += [salu(f"s_add_u32 {sVOFF}, {sVOFF}, 32768", rd=[sVOFF], wr=[sVOFF, 'scc']),
                                      salu(f"s_add_u32 {sVM0}, {sVM0}, {sDELTA}", rd=[sVM0, sDELTA], wr=[sVM0, 'scc'])]
        if dmaK:
            for j in range(8):
                g = min(gM + 1 + 2 * j, NM - 1)
                post[g] += dma('K', j, 'Knew')
            post[min(gM + 17, NM - 1)] += [salu(f"s_add_u32 {sKOFF}, {sKOFF}, 32768", rd=[sKOFF], wr=[sKOFF, 'scc']),
                                           salu(f"s_add_u32 {sKM0}, {sKM0}, {sDELTA}", rd=[sKM0, sDELTA], wr=[sKM0, 'scc'])]

        def pos(key, default):
            return idx.get(key, default)

        streams = []
        LAT = 2

        def expblock(sreg, who, after, before):
            out = []
            for r in range(16):
                x = sreg[r]
                out.append((valu("v_fma_f32", x, x, sC, vNEG[who]), after, before))
                out.append((valu("v_exp_f32", x, x, trans=True), after, before))
            seq = []
            for r in range(16):
                seq.append(out[2 * r])
                seq.append(out[2 * r + 1])
                if r >= 1:
                    seq.append((valu("v_add_f32", vL[who], vL[who], sreg[r - 1]), after, before))
            seq.append(None)
            seq[-1] = (valu("v_add_f32", vL[who], vL[who], sreg[15]), after, before)
            return seq

        def cvt(preg, sreg, t, after, before):
            return [(valu("v_cvt_pk_bf16_f32", preg[4 * t + k], sreg[8 * t + 2 * k], sreg[8 * t + 2 * k + 1]), after, before) for k in range(4)]

        def maxtree(dst, regs, after, before, cont=False):
            out = []
            regs = list(regs)
            if not cont:
                out.append((valu("v_max3_f32", dst, regs[0], regs[1], regs[2]), after, before))
                regs = regs[3:]
            while len(regs) >= 2:
                out.append((valu("v_max3_f32", dst, dst, regs[0], regs[1]), after, before))
                regs = regs[2:]
            if regs:
                out.append((valu("v_max_f32", dst, dst, regs[0]), after, before))
            return out

        def check(who, after, before):
            c = Inst(f"v_cmp_gt_f32 vcc, {vMX[who]}, {vTHR[who]}", 'valu', rd=[vMX[who], vTHR[who]], wr=['vcc'])
            b = Inst(f"s_cbranch_vccnz L_rare_{who}_{name}", 'branch', rd=[])
            l = label(f"L_back_{who}_{name}")
            return [(c, after, before), ([b, l], after, before)]

        END = NM
        if tail:
            st = []
            fl = [salu(f"s_cmp_lg_u32 {sFLAG}, 0", rd=[sFLAG], wr=['scc']),
                  Inst(f"s_cbranch_scc1 L_resc_{name}", 'branch'), label(f"L_rescback_{name}")]
            b_resc = min(pos(('pvxa', 0, 0), END), pos(('qkxb', 15), END))
            st.append((fl, -1 if not qk else 1, b_resc))
            bY = min(pos(('qky', 0), END), END)
            bY0 = min(bY, pos(('pvy', 0, 0), END) - 0)
            e = expblock(sAY, 'A', -1, bY0)
            half = [k for k, it in enumerate(e) if it[0].text.startswith("v_add_f32")]
            st += e[:half[7] + 1] + cvt(pAY, sAY, 0, -1, bY0) + e[half[7] + 1:] + cvt(pAY, sAY, 1, -1, bY0)
            streams.append(st)
        if head:
            aB = pos(('qkxb', 15), -1) + LAT
            aX = pos(('qkxa', 15), -1) + LAT
            aY = pos(('qky', 15), -1) + LAT
            aB, aX, aY = min(aB, NM - 1), min(aX, NM - 1), min(aY, NM - 1)
            st = maxtree(vMX['B'], [sB[r] for r in range(16)], aB, END) + check('B', aB, END)
            e = expblock(sB, 'B', aB, END)
            st += e
            st += cvt(pB, sB, 0, pos(('pvxb', 0, 7), -1), END) + cvt(pB, sB, 1, pos(('pvxb', 1, 7), -1), END)
            streams.append(st)
            st = maxtree(vMX['A'], [sAX[r] for r in range(16)], aX, END)
            st += maxtree(vMX['A'], [sAY[r] for r in range(16)], aY, END, cont=True) + check('A', aY, END)
            st += expblock(sAX, 'A', aY, END)
            st += cvt(pAX, sAX, 0, pos(('pvxa', 0, 7), -1), END) + cvt(pAX, sAX, 1, pos(('pvxa', 1, 7), -1), END)
            streams.append(st)

        def cost(x):
            return sum(i.cost for i in x) if isinstance(x, list) else x.cost

        CAP = opts['cap']
        for st in streams:
            dl = NM - 1
            acc = 0
            new = []
            for it in reversed(st):
                ins, a, b = it
                if b - 1 < dl:
                    dl = b - 1
                    acc = 0
                acc += cost(ins)
                while acc > 12 and dl > -1:
                    dl -= 1
                    acc -= 12
                new.append((ins, a, b, max(dl, a)))
            st[:] = list(reversed(new))
        out = []
        heads = [0] * len(streams)
        for g in range(-1, NM):
            if g >= 0:
                out.append(mf[g])
            used = 0
            for x in pre[g]:
                out.append(x); used += x.cost
            for _, f, reads in sorted(gaps[g], key=lambda z: z[1]):
                out += reads; used += 4 * len(reads)
            for x in post[g]:
                out.append(x); used += x.cost
            if g + 1 < NM:
                used += 2
            while True:
                best = None
                for si, st in enumerate(streams):
                    if heads[si] < len(st):
                        ins, a, b, dl = st[heads[si]]
                        if a <= g:
                            if best is None or dl < best[0]:
                                best = (dl, si)
                if best is None:
                    break
                dl, si = best
                ins, a, b, _ = streams[si][heads[si]]
                forced = (g == NM - 1) or any(it[2] - 1 <= g for it in streams[si][heads[si]:])
                if g == -1 and NM > 0 and not forced:
                    break
                if used + cost(ins) > CAP and not forced:
                    break
                if isinstance(ins, list):
                    out += ins
                else:
                    out.append(ins)
                used += cost(ins)
                heads[si] += 1
        for si, st in enumerate(streams):
            assert heads[si] == len(st), (name, si, heads[si], len(st))
        self.insts = out + final

    def rare(self, head, tail):
        n = self.name
        out = []
        if head:
            for who in 'AB':
                mx = vMX[who]
                out += [label(f"L_rare_{who}_{n}"),
                        valu("v_mov_b32", vT0, mx), nop(1),
                        Inst(f"v_permlane32_swap_b32 {vT0}, {mx}", 'valu', rd=[vT0, mx], wr=[vT0, mx], perm=True),
                        nop(1),
                        valu("v_max_f32", mx, mx, vT0),
                        valu("v_subrev_f32", vT0, f32(THR), vTHR[who]),
                        valu("v_max_f32", vT0, vT0, mx),
                        valu("v_add_f32", vTHR[who], f32(THR), vT0),
                        valu("v_mul_f32", vT0, f32(-CSCALE), vT0),
                        valu("v_sub_f32", vT1, vT0, vNEG[who]),
                        valu("v_exp_f32", vAL[who], vT1, trans=True),
                        valu("v_mov_b32", vNEG[who], vT0),
                        nop(0),
                        valu("v_mul_f32", vL[who], vL[who], vAL[who]),
                        salu(f"s_or_b32 {sFLAG}, {sFLAG}, {1 if who == 'A' else 2}"),
                        Inst(f"s_branch L_back_{who}_{n}", 'branch')]
        if tail:
            out += [label(f"L_resc_{n}"), nop(15),
                    salu(f"s_bitcmp1_b32 {sFLAG}, 0"), Inst(f"s_cbranch_scc0 L_rescB_{n}", 'branch')]
            for dt in range(8):
                for r in range(16):
                    out.append(valu("v_mul_f32", OA[dt][r], OA[dt][r], vAL['A']))
            out += [label(f"L_rescB_{n}"),
                    salu(f"s_bitcmp1_b32 {sFLAG}, 1"), Inst(f"s_cbranch_scc0 L_rescE_{n}", 'branch')]
            for dt in range(8):
                for r in range(0, 16, 2):
                    out += [valu("v_accvgpr_read_b32", vT0, OB[dt][r]), valu("v_accvgpr_read_b32", vT1, OB[dt][r + 1]),
                            valu("v_mul_f32", vT0, vT0, vAL['B']), valu("v_mul_f32", vT1, vT1, vAL['B']),
                            valu("v_accvgpr_write_b32", OB[dt][r], vT0), valu("v_accvgpr_write_b32", OB[dt][r + 1], vT1)]
            out += [label(f"L_rescE_{n}"), salu(f"s_mov_b32 {sFLAG}, 0"), nop(3),
                    Inst(f"s_branch L_rescback_{n}", 'branch')]
        return out


def prologue():
    o = []
    a = o.append
    a(salu("s_cmp_ge_u32 s2, 256"))
    a(Inst("s_cbranch_scc1 L_end", 'branch'))
    a(raw("s_load_dwordx4 s[36:39], s[0:1], 0", 'smem'))
    a(raw("s_load_dwordx4 s[40:43], s[0:1], 16", 'smem'))
    a(salu("s_and_b32 s32, s2, 7"))
    a(salu("s_lshr_b32 s33, s2, 3"))
    a(salu("s_lshl_b32 s32, s32, 3"))
    a(salu("s_lshr_b32 s34, s33, 2"))
    a(salu("s_add_u32 s32, s32, s34"))
    a(salu("s_and_b32 s33, s33, 3"))
    a(salu("s_lshl_b32 s34, s32, 18"))
    a(salu("s_mul_i32 s35, s32, 393216"))
    a(salu("s_mul_i32 s33, s33, 98304"))
    a(salu("s_add_u32 s35, s35, s33"))
    t0, t1, t2, t3 = V(24), V(25), V(26), V(27)
    a(valu("v_lshrrev_b32", t0, 6, V(0)))
    a(valu("v_and_b32", V(0), 63, V(0)))
    a(Inst(f"v_readfirstlane_b32 {sW}, {t0}", 'valu', rd=[t0], wr=[sW], rfl=True))
    a(valu("v_lshlrev_b32", vLANE16, 4, V(0)))
    a(nop(1))
    a(salu(f"s_and_b32 {sP}, {sW}, 1", rd=[sW], wr=[sP]))
    a(valu("v_and_b32", t0, 3, V(0)))
    a(valu("v_lshlrev_b32", t0, 2, t0))
    a(valu("v_bfe_u32", t1, V(0), 3, 2))
    a(valu("v_add_u32", t0, t0, t1))
    a(valu("v_mul_u32_u24", t0, PIECE, t0))
    a(valu("v_bfe_u32", t1, V(0), 2, 1))
    a(valu("v_lshl_add_u32", t0, t1, 9, t0))
    a(valu("v_lshrrev_b32", t2, 5, V(0)))
    a(valu("v_lshl_add_u32", t0, t2, 4, t0))
    a(salu(f"s_mul_i32 s44, {sP}, {HALF}", rd=[sP]))
    a(salu(f"s_sub_u32 s45, {HALF}, s44"))
    a(valu("v_add_u32", vKX, S(44), t0))
    a(valu("v_add_u32", vKY, S(45), t0))
    a(valu("v_bfe_u32", t0, V(0), 2, 2))
    a(valu("v_mul_u32_u24", t0, 4 * PIECE, t0))
    a(valu("v_lshl_add_u32", t0, t2, 9, t0))
    a(valu("v_bfe_u32", t1, V(0), 4, 1))
    a(valu("v_lshl_add_u32", t0, t1, 5, t0))
    a(valu("v_and_b32", t1, 1, V(0)))
    a(valu("v_lshl_add_u32", t0, t1, 4, t0))
    a(valu("v_bfe_u32", t1, V(0), 1, 1))
    a(valu("v_lshl_add_u32", t0, t1, 3, t0))
    a(valu("v_add_u32", t0, VBUF[0], t0))
    a(salu(f"s_lshl_b32 s46, {sP}, 8", rd=[sP]))
    a(salu("s_add_u32 s47, s44, s46"))
    a(valu("v_add_u32", vVXl, S(47), t0))
    a(salu("s_sub_u32 s47, s44, s46"))
    a(valu("v_add_u32", vVXh, S(47), t0))
    a(salu("s_add_u32 s47, s45, s46"))
    a(valu("v_add_u32", vVYl, S(47), t0))
    a(salu("s_sub_u32 s47, s45, s46"))
    a(valu("v_add_u32", vVYh, S(47), t0))
    a(salu(f"s_lshl_b32 s47, {sW}, 13", rd=[sW]))
    a(valu("v_add_u32", vDMA0, S(47), vLANE16))
    a(valu("v_add_u32", vDMA1, 4096, vDMA0))
    a(valu("v_and_b32", t0, 31, V(0)))
    a(valu("v_lshlrev_b32", t0, 9, t0))
    a(valu("v_lshl_add_u32", t0, t2, 4, t0))
    a(salu(f"s_lshl_b32 s47, {sW}, 14", rd=[sW]))
    a(valu("v_add_u32", vQOFF, S(47), t0))
    a(salu(f"s_lshr_b32 s47, {sW}, 1", rd=[sW]))
    a(salu("s_lshl_b32 s47, s47, 14"))
    a(salu("s_add_u32 s47, s47, 65536"))
    a(valu("v_add_u32", vQOFFB, S(47), t0))
    a(salu(f"s_mul_i32 {sKM0}, {sW}, {8 * PIECE}", rd=[sW], wr=[sKM0]))
    a(salu(f"s_add_u32 {sVM0}, {sKM0}, {VBUF[0]}", rd=[sKM0], wr=[sVM0]))
    a(salu(f"s_mov_b32 {sKOFF}, 0", wr=[sKOFF]))
    a(salu(f"s_mov_b32 {sVOFF}, 0", wr=[sVOFF]))
    a(salu(f"s_mov_b32 {sDELTA}, {TILE}", wr=[sDELTA]))
    a(salu(f"s_mov_b32 {sC}, {f32(CSCALE)}", wr=[sC]))
    a(salu(f"s_mov_b32 {sFLAG}, 0", wr=[sFLAG]))
    a(salu(f"s_mov_b32 {sIT}, 0", wr=[sIT]))
    a(raw("s_waitcnt lgkmcnt(0)", 'salu'))
    for srd, ptr, off, size in ((sK, 38, 's34', 262144), (sQ, 36, 's35', 98304), (sV, 40, 's34', 262144), (sO, 42, 's35', 98304)):
        a(salu(f"s_add_u32 s{srd.lo}, s{ptr}, {off}", wr=[srd[0]]))
        a(salu(f"s_addc_u32 s{srd.lo + 1}, s{ptr + 1}, 0", wr=[srd[1]]))
        a(salu(f"s_mov_b32 s{srd.lo + 2}, {size}", wr=[srd[2]]))
        a(salu(f"s_mov_b32 s{srd.lo + 3}, 0x20000", wr=[srd[3]]))
    for j in range(8):
        o += dma('K', j, 'K0')
    a(salu(f"s_add_u32 {sKOFF}, {sKOFF}, 32768", rd=[sKOFF], wr=[sKOFF]))
    a(salu(f"s_add_u32 {sKM0}, {sKM0}, {sDELTA}", rd=[sKM0], wr=[sKM0]))
    for s in range(16):
        a(Inst(f"buffer_load_dwordx4 {QA[s]}, {vQOFF}, {sQ}, 0 offen offset:{32 * s}", 'vmem', rd=[vQOFF, sQ], wr=[QA[s]]))
        a(Inst(f"buffer_load_dwordx4 {QB[s]}, {vQOFFB}, {sQ}, 0 offen offset:{32 * s}", 'vmem', rd=[vQOFFB, sQ], wr=[QB[s]]))
    for j in range(8):
        o += dma('V', j, 'Vcur')
    a(salu(f"s_add_u32 {sVOFF}, {sVOFF}, 32768", rd=[sVOFF], wr=[sVOFF]))
    a(salu(f"s_add_u32 {sVM0}, {sVM0}, {sDELTA}", rd=[sVM0], wr=[sVM0]))
    for j in range(8):
        o += dma('K', j, 'Knext')
    a(salu(f"s_add_u32 {sKOFF}, {sKOFF}, 32768", rd=[sKOFF], wr=[sKOFF]))
    a(salu(f"s_sub_u32 {sKM0}, {sKM0}, {sDELTA}", rd=[sKM0], wr=[sKM0]))
    for who in 'AB':
        a(valu("v_mov_b32", vNEG[who], "0x7f800000"))
        a(valu("v_mov_b32", vTHR[who], "0xff800000"))
        a(valu("v_mov_b32", vL[who], 0))
        a(valu("v_mov_b32", vAL[who], 1.0))
    for dt in range(8):
        for r in range(16):
            a(valu("v_mov_b32", OA[dt][r], 0))
            a(valu("v_accvgpr_write_b32", OB[dt][r], 0))
    a(wait(tags=['K0']))
    a(barrier())
    return o


def epilogue():
    o = []
    a = o.append
    t = [V(24 + i) for i in range(16)]
    a(nop(15))
    for who in 'AB':
        a(valu("v_mov_b32", vT0, vL[who]))
        a(nop(1))
        a(Inst(f"v_permlane32_swap_b32 {vT0}, {vL[who]}", 'valu', rd=[vT0, vL[who]], wr=[vT0, vL[who]], perm=True))
        a(nop(1))
        a(valu("v_add_f32", vL[who], vL[who], vT0))
    wr, rdp = V(40), V(41)
    a(salu(f"s_mul_i32 s44, {sW}, 16896", rd=[sW]))
    a(salu(f"s_xor_b32 s45, {sW}, 1", rd=[sW]))
    a(salu("s_mul_i32 s45, s45, 16896"))
    a(valu("v_add_u32", wr, S(44), vLANE16))
    a(valu("v_add_u32", rdp, S(45), vLANE16))
    for dt in range(4, 8):
        for k in range(4):
            a(ds_write("ds_write_b128", wr, OB[dt].sub(4 * k, 4), ((dt - 4) * 4 + k) * 1024))
    ml = V(42, 2)
    a(valu("v_mov_b32", ml[0], vNEG['B']))
    a(valu("v_mov_b32", ml[1], vL['B']))
    a(valu("v_lshrrev_b32", V(44), 1, vLANE16))
    a(valu("v_add_u32", V(45), S(45), V(44)))
    a(valu("v_add_u32", V(44), S(44), V(44)))
    a(ds_write("ds_write_b64", V(44), ml, 16384))
    inv = V(46)
    a(valu("v_rcp_f32", inv, vL['A'], trans=True))
    ol, oh = V(47), V(48)
    a(salu(f"s_lshl_b32 s46, {sP}, 8", rd=[sP]))
    a(valu("v_add_u32", ol, S(46), vQOFF))
    a(valu("v_subrev_u32", oh, S(46), vQOFF))
    pk = [V(56 + 4 * i, 4) for i in range(4)]
    n = 0
    for dt in range(8):
        for k in range(2):
            p = pk[n % 4]; n += 1
            for j in range(8):
                x = OA[dt][8 * k + j]
                a(valu("v_mul_f32", x, x, inv))
            for j in range(4):
                a(valu("v_cvt_pk_bf16_f32", p[j], OA[dt][8 * k + 2 * j], OA[dt][8 * k + 2 * j + 1]))
            st = Inst(f"buffer_store_dwordx4 {p}, {ol if dt < 4 else oh}, {sO}, 0 offen offset:{64 * dt + 32 * k}", 'vmem',
                      rd=[p, ol if dt < 4 else oh, sO], wr=[])
            st.store_data = p.regs()
            a(st)
        if dt == 1:
            a(wait(lgkm0=True))
            a(barrier())
    pml = V(50, 2)
    a(ds_read("ds_read_b64", pml, V(45), 16384))
    for dt in range(4):
        for k in range(4):
            a(ds_read("ds_read_b128", OA[dt].sub(4 * k, 4), rdp, (dt * 4 + k) * 1024))
    nm, fo, fp = V(52), V(53), V(54)
    a(valu("v_min_f32", nm, vNEG['B'], pml[0]))
    a(valu("v_sub_f32", fo, nm, vNEG['B']))
    a(valu("v_sub_f32", fp, nm, pml[0]))
    a(valu("v_exp_f32", fo, fo, trans=True))
    a(valu("v_exp_f32", fp, fp, trans=True))
    a(nop(0))
    a(valu("v_mul_f32", nm, vL['B'], fo))
    a(valu("v_fma_f32", nm, pml[1], fp, nm))
    a(valu("v_rcp_f32", nm, nm, trans=True))
    a(nop(0))
    a(valu("v_mul_f32", fo, fo, nm))
    a(valu("v_mul_f32", fp, fp, nm))
    ob = V(55)
    a(valu("v_add_u32", ob, S(46), vQOFFB))
    for dt in range(4):
        for k in range(2):
            p = pk[n % 4]; n += 1
            for j in range(8):
                a(valu("v_accvgpr_read_b32", t[j], OB[dt][8 * k + j]))
            for j in range(8):
                a(valu("v_mul_f32", t[j], t[j], fo))
            for j in range(8):
                a(valu("v_fma_f32", t[j], OA[dt][8 * k + j], fp, t[j]))
            for j in range(4):
                a(valu("v_cvt_pk_bf16_f32", p[j], t[2 * j], t[2 * j + 1]))
            st = Inst(f"buffer_store_dwordx4 {p}, {ob}, {sO}, 0 offen offset:{64 * dt + 32 * k}", 'vmem', rd=[p, ob, sO], wr=[])
            st.store_data = p.regs()
            a(st)
    a(label("L_end"))
    a(Inst("s_endpgm", 'branch'))
    return o


def retag(insts, m):
    pass


def main():
    pro = prologue()
    b0 = Body('p', qk=True, pv=False, head=True, tail=False, next_qk=True, dmaV=False, dmaK=True, first=True)
    bl = Body('l', qk=True, pv=True, head=True, tail=True, next_qk=True, dmaV=True, dmaK=True)
    bf = Body('f', qk=False, pv=True, head=False, tail=True, next_qk=None, dmaV=False, dmaK=False)
    epi = epilogue()
    b0.insts.append(salu(f"s_mov_b32 {sFLAG}, 0", wr=[sFLAG]))
    b0.insts.append(salu(f"s_sub_u32 {sDELTA}, 0, {sDELTA}", rd=[sDELTA], wr=[sDELTA]))
    loop_head = [label("L_loop")]
    loop_tail = [salu(f"s_sub_u32 {sDELTA}, 0, {sDELTA}", rd=[sDELTA], wr=[sDELTA]),
                 salu(f"s_add_u32 {sIT}, {sIT}, 1", rd=[sIT], wr=[sIT]),
                 salu(f"s_cmp_lt_u32 {sIT}, {NSTEP - 1}"),
                 Inst("s_cbranch_scc1 L_loop", 'branch')]
    dyn = []
    dyn += pro + b0.insts
    for it in range(NSTEP - 1):
        dyn.append(Inst("", 'retag'))
        dyn += loop_head + bl.insts + loop_tail
    dyn.append(Inst("", 'retag'))
    dyn += bf.insts + epi
    analyze2(dyn)
    analyze2(dyn)
    rare = b0.rare(True, False) + bl.rare(True, True) + bf.rare(False, True)
    hdr = open('standalone__gqa_softmax__near_ridge.s.ref').read().split('\n')
    hdr = [l for l in hdr if l.startswith(';') and '@launch' not in l and 'Override' not in l and 'grid=ceil' not in l]
    txt = "\n".join(hdr) + f"\n; @launch grid=(256,1,1) block=(256,1,1) lds={LDS_BYTES}\n"
    txt += f""".amdgcn_target "amdgcn-amd-amdhsa--gfx950"
.text
.globl {KNAME}
.p2align 8
.type {KNAME},@function
{KNAME}:
"""
    txt += emit(pro) + "\n" + emit(b0.insts) + "\n" + emit(loop_head + bl.insts + loop_tail) + "\n" + emit(bf.insts) + "\n" + emit(epi) + "\n"
    txt += emit(rare) + "\n"
    txt += f""".section .rodata,"a"
.p2align 6
.amdhsa_kernel {KNAME}
  .amdhsa_next_free_vgpr 512
  .amdhsa_next_free_sgpr 102
  .amdhsa_accum_offset 256
  .amdhsa_group_segment_fixed_size 0
  .amdhsa_kernarg_size 48
  .amdhsa_user_sgpr_count 2
  .amdhsa_user_sgpr_kernarg_segment_ptr 1
  .amdhsa_system_sgpr_workgroup_id_x 1
.end_amdhsa_kernel
"""
    open(sys.argv[1], 'w').write(txt)


def analyze2(dyn):
    import fw
    seq = []
    gen = 0
    for ins in dyn:
        if ins.kind == 'retag':
            gen += 1
            continue
        seq.append((ins, gen))
    wrapped = []
    for ins, g in seq:
        if ins.kind == 'vmem' and ins.tag in ('Vnew', 'Knew'):
            w = Inst(ins.text, 'vmem', cost=ins.cost)
            w.rd, w.wr, w.dma = ins.rd, ins.wr, ins.dma
            w.tag = ('V', g + 1) if ins.tag == 'Vnew' else ('K', g + 1)
            w.orig = ins
            wrapped.append(w)
        elif ins.kind == 'vmem' and ins.tag in ('Vcur', 'Knext'):
            w = Inst(ins.text, 'vmem', cost=ins.cost)
            w.rd, w.wr, w.dma = ins.rd, ins.wr, ins.dma
            w.tag = ('V', 1) if ins.tag == 'Vcur' else ('K', 0)
            w.orig = ins
            wrapped.append(w)
        elif ins.kind == 'wait' and ins.wait_tags and ins.wait_tags[0] in ('Vcur', 'Knext'):
            w = wait(tags=[('V', g) if ins.wait_tags[0] == 'Vcur' else ('K', g)], lgkm0=ins.wait_lgkm0)
            w.orig = ins
            w.res_vm = None
            wrapped.append(w)
        else:
            wrapped.append(ins)
    fw.analyze(wrapped)
    for w in wrapped:
        o = getattr(w, 'orig', None)
        if o is not None:
            if w.kind == 'wait':
                if w.res_vm is not None:
                    o.res_vm = w.res_vm if o.res_vm is None else min(o.res_vm, w.res_vm)
            else:
                o.pre_nop = max(o.pre_nop, w.pre_nop)
                if w.pre_vm is not None:
                    o.pre_vm = w.pre_vm
                if w.pre_lgkm is not None:
                    o.pre_lgkm = w.pre_lgkm


main()
```

```python
import sys
KNAME = "standalone__gqa_softmax__near_ridge_kernel"
out = sys.argv[1]
o = dict(shape=32, pat=0, iters=8, valu=0, lds=0, acc='v', waves=4, bsrc=0)
for a in sys.argv[2:]:
    k, v = a.split('=')
    o[k] = int(v) if v.lstrip('-').isdigit() else v
L = []
a = L.append
a("s_load_dwordx4 s[36:39], s[0:1], 0")
a("s_load_dwordx2 s[40:41], s[0:1], 40")
a("s_memrealtime s[60:61]")
a("s_waitcnt lgkmcnt(0)")
a("s_mov_b32 s76, s60")
a("s_mov_b32 s4, s36\ns_mov_b32 s5, s37\ns_mov_b32 s6, 25165824\ns_mov_b32 s7, 0x20000")
a("s_mov_b32 s8, s38\ns_mov_b32 s9, s39\ns_mov_b32 s10, 16777216\ns_mov_b32 s11, 0x20000")
a("v_lshrrev_b32 v2, 6, v0\ns_nop 1\nv_readfirstlane_b32 s28, v2")
a("v_lshlrev_b32 v1, 4, v0")
a("s_lshl_b32 s3, s2, 16")
for i in range(16):
    a(f"buffer_load_dwordx4 v[{64+4*i}:{67+4*i}], v1, s[8:11], s3 offen offset:0")
    a("s_add_u32 s3, s3, 4096")
a("s_lshl_b32 s3, s2, 16")
for i in range(16):
    a(f"buffer_load_dwordx4 a[{128+4*i}:{131+4*i}], v1, s[4:7], s3 offen offset:0")
    a("s_add_u32 s3, s3, 4096")
for i in range(128):
    a(f"v_mov_b32 v{128+i}, 0")
    a(f"v_accvgpr_write_b32 a{i}, 0")
for i in range(16, 64):
    a(f"v_mov_b32 v{i}, 1.0")
a("v_and_b32 v3, 63, v0\nv_lshlrev_b32 v3, 4, v3")
a("s_waitcnt vmcnt(0)")
if o['lds']:
    for i in range(16):
        a(f"ds_write_b128 v1, v[{64+4*i}:{67+4*i}] offset:{4096*i}")
    a("s_waitcnt lgkmcnt(0)")
a("s_barrier")
a("s_memtime s[60:61]\ns_waitcnt lgkmcnt(0)\ns_mov_b32 s64, s60\ns_mov_b32 s65, s60\ns_mov_b32 s66, s60")
a("s_memrealtime s[60:61]\ns_waitcnt lgkmcnt(0)\ns_mov_b32 s78, s60")
a("s_mov_b32 s21, 0")
a("L_loop:")
n = 96 if o['shape'] == 32 else 192
for i in range(n):
    pat = o['pat']
    if pat == 0:
        fa, fb = i % 16, (i * 5 + 3) % 16
    elif pat == 1:
        fa, fb = (i // 2) % 16, (i * 5 + 3) % 16
    elif pat == 2:
        fa, fb = i % 16, ((i // 2) * 5 + 3) % 16
    elif pat == 3:
        fa, fb = (i // 4) % 16, (i * 5 + 3) % 16
    elif pat == 4:
        fa, fb = i % 16, ((i // 8) * 5 + 3) % 16
    elif pat == 5:
        fa, fb = 0, 0
    elif pat == 6:
        fa, fb = (i // 3) % 16, (i * 5 + 3) % 16
    A = f"v[{64+4*fa}:{67+4*fa}]"
    B = f"a[{128+4*fb}:{131+4*fb}]"
    if o['shape'] == 32:
        k = i % 8 if o.get('chain', 0) == 0 else (i // 16) % 8
        D = f"v[{128+16*k}:{143+16*k}]" if o['acc'] == 'v' else f"a[{16*k}:{16*k+15}]"
        a(f"v_mfma_f32_32x32x16_bf16 {D}, {A}, {B}, {D}")
    else:
        k = i % 32 if o.get('chain', 0) == 0 else (i // 8) % 32
        D = f"v[{128+4*k}:{131+4*k}]" if o['acc'] == 'v' else f"a[{4*k}:{4*k+3}]"
        a(f"v_mfma_f32_16x16x32_bf16 {D}, {A}, {B}, {D}")
    per = o['valu'] if o['shape'] == 32 else (o['valu'] // 2 + ((o['valu'] % 2) * (i % 2)))
    for j in range(per):
        r = 16 + (i * per + j) % 40
        a(f"v_fma_f32 v{r}, v{r}, v{r+1}, v{64 + (i*per+j) % 64}")
    if o['lds']:
        step = 3 if o['shape'] == 32 else 6
        if i % step < o['lds']:
            f = (i // step * o['lds'] + i % step) % 16
            tgt = (fa + 8) % 16
            a(f"ds_read_b128 v[{64+4*tgt}:{67+4*tgt}], v3 offset:{4096*f + 1024*((i//7)%4)}")
a("s_memtime s[60:61]")
for k in range(9, 3, -1):
    a(f"s_mov_b32 s{64+k}, s{63+k}")
a("s_waitcnt lgkmcnt(0)\ns_mov_b32 s67, s60")
a("s_add_u32 s21, s21, 1")
a(f"s_cmp_lt_u32 s21, {o['iters']}")
a("s_cbranch_scc1 L_loop")
a("s_memtime s[60:61]\ns_waitcnt lgkmcnt(0)\ns_mov_b32 s74, s60\ns_mov_b32 s75, s60")
a("s_memrealtime s[60:61]\ns_waitcnt lgkmcnt(0)\ns_mov_b32 s79, s60\ns_mov_b32 s77, s60")
a("s_mov_b32 s42, 0x100000\ns_mov_b32 s43, 0x20000")
a("s_nop 15")
a("v_add_f32 v4, v128, v16")
for k in range(16):
    a(f"v_writelane_b32 v4, s{64+k}, {k}")
a("s_lshl_b32 s44, s2, 2\ns_add_u32 s44, s44, s28\ns_lshl_b32 s44, s44, 8")
a("v_lshrrev_b32 v1, 2, v3\ns_nop 4")
a("buffer_store_dword v4, v1, s[40:43], s44 offen")
a("s_endpgm")
txt = f"""; @launch grid=(256,1,1) block=(256,1,1) lds=65536
.amdgcn_target "amdgcn-amd-amdhsa--gfx950"
.text
.globl {KNAME}
.p2align 8
.type {KNAME},@function
{KNAME}:
""" + "\n".join(L) + f"""
.section .rodata,"a"
.p2align 6
.amdhsa_kernel {KNAME}
  .amdhsa_next_free_vgpr 512
  .amdhsa_next_free_sgpr 102
  .amdhsa_accum_offset 256
  .amdhsa_group_segment_fixed_size 0
  .amdhsa_kernarg_size 48
  .amdhsa_user_sgpr_count 2
  .amdhsa_user_sgpr_kernarg_segment_ptr 1
  .amdhsa_system_sgpr_workgroup_id_x 1
.end_amdhsa_kernel
"""
open(out, 'w').write(txt)
```

```python
import sys, math, struct
from fw import *

KNAME = "standalone__gqa_softmax__near_ridge_kernel"
PIECE = 1040
HALF = 16 * PIECE
TILE = 32 * PIECE
KBUF = [0, TILE]
VBUF = [2 * TILE, 3 * TILE]
LDS_BYTES = 4 * TILE
CSCALE = math.log2(math.e) / 16.0
THR = 8.0 / CSCALE

opts = dict(cap=20, dist=6, bS=89, bM=41, stamp=0, nstep=8)
for a in sys.argv[2:]:
    k, v = a.split('=')
    opts[k] = int(v)


NSTEP = opts['nstep']


def f32(x):
    return "0x%08x" % struct.unpack('<I', struct.pack('<f', x))[0]


vKX, vKY = V(1), V(2)
vVXl, vVXh, vVYl, vVYh = V(3), V(4), V(5), V(6)
vDMA0, vDMA1 = V(7), V(8)
vNEG = {'A': V(9), 'B': V(10)}
vTHR = {'A': V(11), 'B': V(12)}
vL = {'A': V(13), 'B': V(14)}
vAL = {'A': V(15), 'B': V(16)}
vMX = {'A': V(17), 'B': V(18)}
vT0, vT1 = V(19), V(20)
vQOFF = V(21)
vQOFFB = V(22)
vLANE16 = V(23)
sAX, sB, sAY = V(24, 16), V(40, 16), V(56, 16)
pAX, pB, pAY = V(72, 8), V(80, 8), V(88, 8)
FR = [V(96 + 4 * i, 4) for i in range(8)]
OA = [V(128 + 16 * i, 16) for i in range(8)]
OB = [A(16 * i, 16) for i in range(8)]
QA = [A(128 + 4 * i, 4) for i in range(16)]
QB = [A(192 + 4 * i, 4) for i in range(16)]
sQ, sK, sV, sO = S(4, 4), S(8, 4), S(12, 4), S(16, 4)
sC = S(20)
sIT = S(21)
sKOFF, sVOFF = S(22), S(23)
sKM0, sVM0 = S(24), S(25)
sDELTA = S(26)
sFLAG = S(27)
sW, sP = S(28), S(29)
sT = [S(32 + i) for i in range(8)]


def dma(kind, j, tag):
    base, srd, off = (sKM0, sK, sKOFF) if kind == 'K' else (sVM0, sV, sVOFF)
    m0 = salu(f"s_add_u32 m0, {base}, {j * PIECE - (j % 4) * 1024 + 0}", rd=[base], wr=['m0', 'scc'])
    voff = vDMA0 if j < 4 else vDMA1
    ld = Inst(f"buffer_load_dwordx4 {voff}, {srd}, {off} offen offset:{(j % 4) * 1024} lds", 'vmem',
              rd=[voff, srd, off, 'm0'], wr=[], dma=True, tag=tag, cost=8)
    return [m0, ld]


class Body:
    def __init__(self, name, qk, pv, head, tail, next_qk, dmaV, dmaK, first=False):
        self.name = name
        mf = []
        frags = []
        idx = {}

        def add(m, key):
            idx[key] = len(mf)
            mf.append(m)

        fcount = [0]

        def newfrag(kind, *args):
            f = fcount[0]
            fcount[0] += 1
            frags.append([kind, args, len(mf), None])
            return FR[f % 8], f

        if qk:
            for s in range(16):
                fr, f = newfrag('K', vKX, s)
                add(mfma(sAX, fr, QA[s], sAX if s else 0), ('qkxa', s))
                add(mfma(sB, fr, QB[s], sB if s else 0), ('qkxb', s))
                frags[f][3] = len(mf) - 1
            for s in range(16):
                fr, f = newfrag('K', vKY, s)
                add(mfma(sAY, fr, QA[s], sAY if s else 0), ('qky', s))
                frags[f][3] = len(mf) - 1
        nkf = fcount[0]
        if pv:
            for t in range(2):
                for dt in range(8):
                    fr, f = newfrag('V', vVXl if dt < 4 else vVXh, t, dt)
                    add(mfma(OA[dt], fr, pAX.sub(4 * t, 4), OA[dt]), ('pvxa', t, dt))
                    add(mfma(OB[dt], fr, pB.sub(4 * t, 4), OB[dt]), ('pvxb', t, dt))
                    frags[f][3] = len(mf) - 1
            for t in range(2):
                for dt in range(8):
                    fr, f = newfrag('V', vVYl if dt < 4 else vVYh, t, dt)
                    add(mfma(OA[dt], fr, pAY.sub(4 * t, 4), OA[dt]), ('pvy', t, dt))
                    frags[f][3] = len(mf) - 1
        nf = fcount[0]
        assert nf % 8 == 0
        NM = len(mf)
        self.NM = NM
        gaps = {g: [] for g in range(-1, NM)}
        DIST = opts['dist']

        def fragreads(kind, args, fr):
            if kind == 'K':
                a, s = args
                return [ds_read("ds_read_b128", fr, a, 32 * s)]
            a, t, dt = args
            return [ds_read("ds_read_b64_tr_b16", fr.sub(2 * e, 2), a, PIECE * (2 * t + e) + 64 * dt) for e in range(2)]

        NPRE = 4
        gM = None
        if pv:
            first_v = frags[nkf][2]
            gM = (first_v - (48 - opts['bM'])) if qk else -1
        elif qk:
            gM = NM - 1
        gS = NM - (96 - opts['bS']) if pv else NM - 1
        for f, (kind, args, fu, lu) in enumerate(frags):
            if f < NPRE and qk and not first:
                continue
            g = fu - DIST
            if f >= 8:
                g = max(g, frags[f - 8][3])
            g = max(g, -1)
            if kind == 'K':
                g = min(g, gM - 2) if f >= 8 and gM - 2 >= frags[f - 8][3] else g
                assert g < gM or not pv, (f, g, gM)
            if kind == 'V':
                g = max(g, gM)
                if next_qk or True:
                    lim = gS - 2
                    if g > lim:
                        g = max(lim, frags[f - 8][3] if f >= 8 else -1)
                    assert g < gS or g == -1, (f, g, gS)
            gaps[g].append(('lds', f, fragreads(kind, args, FR[f % 8])))
        for f, (kind, args, fu, lu) in enumerate(frags):
            if fu == lu and f % 2 == 0 and f + 1 < nf and frags[f + 1][0] == kind:
                mf[fu].extra_wait = [FR[(f + 1) % 8]]
        pre = {g: [] for g in range(-1, NM)}
        post = {g: [] for g in range(-1, NM)}
        final = []
        if gM is not None:
            if qk:
                pre[gM] += [wait(tags=['Vcur'] if pv else None, lgkm0=True), barrier()]
            else:
                pre[gM] += [wait(vm0=True, lgkm0=True), barrier()]
        if qk:
            pre[gM] += [valu("v_add_u32", vKX, sDELTA, vKX), valu("v_add_u32", vKY, sDELTA, vKY)]
        if next_qk is not None:
            sb = [wait(tags=['Knext'] if next_qk else None, lgkm0=True), barrier()]
            if pv:
                pre[gS] += sb
                post[gS] += [valu("v_subrev_u32", a, sDELTA, a) for a in (vVXl, vVXh, vVYl, vVYh)]
            else:
                final += sb
            if next_qk:
                for f in range(NPRE):
                    if not pv:
                        final += fragreads('K', (vKX, f), FR[f])
                        continue
                    g = gS
                    fb = nf - 8 + f
                    if fb >= 0:
                        g = max(g, frags[fb][3])
                    g = min(max(g, gS + f), NM - 1)
                    gaps[g].append(('lds', 1000 + f, fragreads('K', (vKX, f), FR[f])))
        self.retag = []
        if dmaV:
            for j in range(8):
                g = min(0 + 2 * j, NM - 1)
                post[g] += dma('V', j, 'Vnew')
            post[min(16, NM - 1)] += [salu(f"s_add_u32 {sVOFF}, {sVOFF}, 32768", rd=[sVOFF], wr=[sVOFF, 'scc']),
                                      salu(f"s_add_u32 {sVM0}, {sVM0}, {sDELTA}", rd=[sVM0, sDELTA], wr=[sVM0, 'scc'])]
            if NSTEP > 8:
                post[min(16, NM - 1)] += [salu(f"s_and_b32 {sVOFF}, {sVOFF}, 0x3ffff", rd=[sVOFF], wr=[sVOFF, 'scc'])]
        if dmaK:
            for j in range(8):
                g = min(gM + 1 + 2 * j, NM - 1)
                post[g] += dma('K', j, 'Knew')
            post[min(gM + 17, NM - 1)] += [salu(f"s_add_u32 {sKOFF}, {sKOFF}, 32768", rd=[sKOFF], wr=[sKOFF, 'scc']),
                                           salu(f"s_add_u32 {sKM0}, {sKM0}, {sDELTA}", rd=[sKM0, sDELTA], wr=[sKM0, 'scc'])]
            if NSTEP > 8:
                post[min(gM + 17, NM - 1)] += [salu(f"s_and_b32 {sKOFF}, {sKOFF}, 0x3ffff", rd=[sKOFF], wr=[sKOFF, 'scc'])]

        def pos(key, default):
            return idx.get(key, default)

        streams = []
        LAT = 2

        def expblock(sreg, who, after, before):
            out = []
            for r in range(16):
                x = sreg[r]
                out.append((valu("v_fma_f32", x, x, sC, vNEG[who]), after, before))
                out.append((valu("v_exp_f32", x, x, trans=True), after, before))
            seq = []
            for r in range(16):
                seq.append(out[2 * r])
                seq.append(out[2 * r + 1])
                if r >= 1:
                    seq.append((valu("v_add_f32", vL[who], vL[who], sreg[r - 1]), after, before))
            seq.append(None)
            seq[-1] = (valu("v_add_f32", vL[who], vL[who], sreg[15]), after, before)
            return seq

        def cvt(preg, sreg, t, after, before):
            return [(valu("v_cvt_pk_bf16_f32", preg[4 * t + k], sreg[8 * t + 2 * k], sreg[8 * t + 2 * k + 1]), after, before) for k in range(4)]

        def maxtree(dst, regs, after, before, cont=False):
            out = []
            regs = list(regs)
            if not cont:
                out.append((valu("v_max3_f32", dst, regs[0], regs[1], regs[2]), after, before))
                regs = regs[3:]
            while len(regs) >= 2:
                out.append((valu("v_max3_f32", dst, dst, regs[0], regs[1]), after, before))
                regs = regs[2:]
            if regs:
                out.append((valu("v_max_f32", dst, dst, regs[0]), after, before))
            return out

        def check(who, after, before):
            c = Inst(f"v_cmp_gt_f32 vcc, {vMX[who]}, {vTHR[who]}", 'valu', rd=[vMX[who], vTHR[who]], wr=['vcc'])
            b = Inst(f"s_cbranch_vccnz L_rare_{who}_{name}", 'branch', rd=[])
            l = label(f"L_back_{who}_{name}")
            return [(c, after, before), ([b, l], after, before)]

        END = NM
        if tail:
            st = []
            fl = [salu(f"s_cmp_lg_u32 {sFLAG}, 0", rd=[sFLAG], wr=['scc']),
                  Inst(f"s_cbranch_scc1 L_resc_{name}", 'branch'), label(f"L_rescback_{name}")]
            b_resc = min(pos(('pvxa', 0, 0), END), pos(('qkxb', 15), END))
            st.append((fl, -1 if not qk else 1, b_resc))
            bY = min(pos(('qky', 0), END), END)
            bY0 = min(bY, pos(('pvy', 0, 0), END) - 0)
            e = expblock(sAY, 'A', -1, bY0)
            half = [k for k, it in enumerate(e) if it[0].text.startswith("v_add_f32")]
            st += e[:half[7] + 1] + cvt(pAY, sAY, 0, -1, bY0) + e[half[7] + 1:] + cvt(pAY, sAY, 1, -1, bY0)
            streams.append(st)
        if head:
            aB = pos(('qkxb', 15), -1) + LAT
            aX = pos(('qkxa', 15), -1) + LAT
            aY = pos(('qky', 15), -1) + LAT
            aB, aX, aY = min(aB, NM - 1), min(aX, NM - 1), min(aY, NM - 1)
            st = maxtree(vMX['B'], [sB[r] for r in range(16)], aB, END) + check('B', aB, END)
            e = expblock(sB, 'B', aB, END)
            st += e
            st += cvt(pB, sB, 0, pos(('pvxb', 0, 7), -1), END) + cvt(pB, sB, 1, pos(('pvxb', 1, 7), -1), END)
            streams.append(st)
            st = maxtree(vMX['A'], [sAX[r] for r in range(16)], aX, END)
            st += maxtree(vMX['A'], [sAY[r] for r in range(16)], aY, END, cont=True) + check('A', aY, END)
            st += expblock(sAX, 'A', aY, END)
            st += cvt(pAX, sAX, 0, pos(('pvxa', 0, 7), -1), END) + cvt(pAX, sAX, 1, pos(('pvxa', 1, 7), -1), END)
            streams.append(st)

        def cost(x):
            return sum(i.cost for i in x) if isinstance(x, list) else x.cost

        CAP = opts['cap']
        for st in streams:
            dl = NM - 1
            acc = 0
            new = []
            for it in reversed(st):
                ins, a, b = it
                if b - 1 < dl:
                    dl = b - 1
                    acc = 0
                acc += cost(ins)
                while acc > 12 and dl > -1:
                    dl -= 1
                    acc -= 12
                new.append((ins, a, b, max(dl, a)))
            st[:] = list(reversed(new))
        out = []
        heads = [0] * len(streams)
        for g in range(-1, NM):
            if g >= 0:
                out.append(mf[g])
            used = 0
            for x in pre[g]:
                out.append(x); used += x.cost
            for _, f, reads in sorted(gaps[g], key=lambda z: z[1]):
                out += reads; used += 4 * len(reads)
            for x in post[g]:
                out.append(x); used += x.cost
            if g + 1 < NM:
                used += 2
            while True:
                best = None
                for si, st in enumerate(streams):
                    if heads[si] < len(st):
                        ins, a, b, dl = st[heads[si]]
                        if a <= g:
                            if best is None or dl < best[0]:
                                best = (dl, si)
                if best is None:
                    break
                dl, si = best
                ins, a, b, _ = streams[si][heads[si]]
                forced = (g == NM - 1) or any(it[2] - 1 <= g for it in streams[si][heads[si]:])
                if g == -1 and NM > 0 and not forced:
                    break
                if used + cost(ins) > CAP and not forced:
                    break
                if isinstance(ins, list):
                    out += ins
                else:
                    out.append(ins)
                used += cost(ins)
                heads[si] += 1
        for si, st in enumerate(streams):
            assert heads[si] == len(st), (name, si, heads[si], len(st))
        self.insts = out + final

    def rare(self, head, tail):
        n = self.name
        out = []
        if head:
            for who in 'AB':
                mx = vMX[who]
                out += [label(f"L_rare_{who}_{n}"),
                        valu("v_mov_b32", vT0, mx), nop(1),
                        Inst(f"v_permlane32_swap_b32 {vT0}, {mx}", 'valu', rd=[vT0, mx], wr=[vT0, mx], perm=True),
                        nop(1),
                        valu("v_max_f32", mx, mx, vT0),
                        valu("v_subrev_f32", vT0, f32(THR), vTHR[who]),
                        valu("v_max_f32", vT0, vT0, mx),
                        valu("v_add_f32", vTHR[who], f32(THR), vT0),
                        valu("v_mul_f32", vT0, f32(-CSCALE), vT0),
                        valu("v_sub_f32", vT1, vT0, vNEG[who]),
                        valu("v_exp_f32", vAL[who], vT1, trans=True),
                        valu("v_mov_b32", vNEG[who], vT0),
                        nop(0),
                        valu("v_mul_f32", vL[who], vL[who], vAL[who]),
                        salu(f"s_or_b32 {sFLAG}, {sFLAG}, {1 if who == 'A' else 2}"),
                        Inst(f"s_branch L_back_{who}_{n}", 'branch')]
        if tail:
            out += [label(f"L_resc_{n}"), nop(15),
                    salu(f"s_bitcmp1_b32 {sFLAG}, 0"), Inst(f"s_cbranch_scc0 L_rescB_{n}", 'branch')]
            for dt in range(8):
                for r in range(16):
                    out.append(valu("v_mul_f32", OA[dt][r], OA[dt][r], vAL['A']))
            out += [label(f"L_rescB_{n}"),
                    salu(f"s_bitcmp1_b32 {sFLAG}, 1"), Inst(f"s_cbranch_scc0 L_rescE_{n}", 'branch')]
            for dt in range(8):
                for r in range(0, 16, 2):
                    out += [valu("v_accvgpr_read_b32", vT0, OB[dt][r]), valu("v_accvgpr_read_b32", vT1, OB[dt][r + 1]),
                            valu("v_mul_f32", vT0, vT0, vAL['B']), valu("v_mul_f32", vT1, vT1, vAL['B']),
                            valu("v_accvgpr_write_b32", OB[dt][r], vT0), valu("v_accvgpr_write_b32", OB[dt][r + 1], vT1)]
            out += [label(f"L_rescE_{n}"), salu(f"s_mov_b32 {sFLAG}, 0"), nop(3),
                    Inst(f"s_branch L_rescback_{n}", 'branch')]
        return out


def stamp(k):
    if not opts['stamp']:
        return []
    return [raw("s_memtime s[60:61]", 'smem'), raw("s_waitcnt lgkmcnt(0)", 'salu'), salu(f"s_mov_b32 s{64 + k}, s60")]


def stamp_shift():
    if not opts['stamp']:
        return []
    o = [raw("s_memtime s[60:61]", 'smem')]
    for k in range(9, 3, -1):
        o.append(salu(f"s_mov_b32 s{64 + k}, s{63 + k}"))
    o += [raw("s_waitcnt lgkmcnt(0)", 'salu'), salu("s_mov_b32 s67, s60")]
    return o


def stamp_out():
    if not opts['stamp']:
        return []
    o = [raw("s_waitcnt vmcnt(0)", 'salu')] + stamp(11)
    o += [raw("s_memrealtime s[60:61]", 'smem'), raw("s_waitcnt lgkmcnt(0)", 'salu'), salu("s_mov_b32 s77, s60")]
    o += [raw("s_load_dwordx2 s[60:61], s[0:1], 40", 'smem'), raw("s_waitcnt lgkmcnt(0)", 'salu'),
          salu("s_mov_b32 s62, 0x100000"), salu("s_mov_b32 s63, 0x20000")]
    for k in range(16):
        o.append(raw(f"v_writelane_b32 v0, s{64 + k}, {k}", 'valu'))
    o += [salu(f"s_lshl_b32 s44, s2, 2"), salu(f"s_add_u32 s44, s44, {sW}"), salu("s_lshl_b32 s44, s44, 8"),
          valu("v_lshrrev_b32", V(1), 2, vLANE16), nop(4),
          raw("buffer_store_dword v0, v1, s[60:63], s44 offen", 'vmem')]
    if opts['stamp'] >= 2:
        o += [salu(f"s_cmp_lg_u32 s44, {(opts['stamp'] - 2) * 1024}"), Inst("s_cbranch_scc1 L_end", 'branch'),
              raw("s_load_dwordx2 s[60:61], s[0:1], 32", 'smem'), raw("s_waitcnt lgkmcnt(0)", 'salu'),
              salu("s_mov_b32 s62, 64"), salu("s_mov_b32 s63, 0x20000"), nop(4),
              raw("buffer_store_dword v0, v1, s[60:63], 0 offen", 'vmem')]
    return o


def prologue():
    o = []
    a = o.append
    a(salu("s_cmp_ge_u32 s2, 256"))
    a(Inst("s_cbranch_scc1 L_end", 'branch'))
    o += stamp(0)
    if opts['stamp']:
        o += [raw("s_memrealtime s[60:61]", 'smem'), raw("s_waitcnt lgkmcnt(0)", 'salu'), salu("s_mov_b32 s76, s60")]
    a(raw("s_load_dwordx4 s[36:39], s[0:1], 0", 'smem'))
    a(raw("s_load_dwordx4 s[40:43], s[0:1], 16", 'smem'))
    a(salu("s_and_b32 s32, s2, 7"))
    a(salu("s_lshr_b32 s33, s2, 3"))
    a(salu("s_lshl_b32 s32, s32, 3"))
    a(salu("s_lshr_b32 s34, s33, 2"))
    a(salu("s_add_u32 s32, s32, s34"))
    a(salu("s_and_b32 s33, s33, 3"))
    a(salu("s_lshl_b32 s34, s32, 18"))
    a(salu("s_mul_i32 s35, s32, 393216"))
    a(salu("s_mul_i32 s33, s33, 98304"))
    a(salu("s_add_u32 s35, s35, s33"))
    t0, t1, t2, t3 = V(24), V(25), V(26), V(27)
    a(valu("v_lshrrev_b32", t0, 6, V(0)))
    a(valu("v_and_b32", V(0), 63, V(0)))
    a(Inst(f"v_readfirstlane_b32 {sW}, {t0}", 'valu', rd=[t0], wr=[sW], rfl=True))
    a(valu("v_lshlrev_b32", vLANE16, 4, V(0)))
    a(nop(1))
    a(salu(f"s_and_b32 {sP}, {sW}, 1", rd=[sW], wr=[sP]))
    a(valu("v_and_b32", t0, 3, V(0)))
    a(valu("v_lshlrev_b32", t0, 2, t0))
    a(valu("v_bfe_u32", t1, V(0), 3, 2))
    a(valu("v_add_u32", t0, t0, t1))
    a(valu("v_mul_u32_u24", t0, PIECE, t0))
    a(valu("v_bfe_u32", t1, V(0), 2, 1))
    a(valu("v_lshl_add_u32", t0, t1, 9, t0))
    a(valu("v_lshrrev_b32", t2, 5, V(0)))
    a(valu("v_lshl_add_u32", t0, t2, 4, t0))
    a(salu(f"s_mul_i32 s44, {sP}, {HALF}", rd=[sP]))
    a(salu(f"s_sub_u32 s45, {HALF}, s44"))
    a(valu("v_add_u32", vKX, S(44), t0))
    a(valu("v_add_u32", vKY, S(45), t0))
    a(valu("v_bfe_u32", t0, V(0), 2, 2))
    a(valu("v_mul_u32_u24", t0, 4 * PIECE, t0))
    a(valu("v_lshl_add_u32", t0, t2, 9, t0))
    a(valu("v_bfe_u32", t1, V(0), 4, 1))
    a(valu("v_lshl_add_u32", t0, t1, 5, t0))
    a(valu("v_and_b32", t1, 1, V(0)))
    a(valu("v_lshl_add_u32", t0, t1, 4, t0))
    a(valu("v_bfe_u32", t1, V(0), 1, 1))
    a(valu("v_lshl_add_u32", t0, t1, 3, t0))
    a(valu("v_add_u32", t0, VBUF[0], t0))
    a(salu(f"s_lshl_b32 s46, {sP}, 8", rd=[sP]))
    a(salu("s_add_u32 s47, s44, s46"))
    a(valu("v_add_u32", vVXl, S(47), t0))
    a(salu("s_sub_u32 s47, s44, s46"))
    a(valu("v_add_u32", vVXh, S(47), t0))
    a(salu("s_add_u32 s47, s45, s46"))
    a(valu("v_add_u32", vVYl, S(47), t0))
    a(salu("s_sub_u32 s47, s45, s46"))
    a(valu("v_add_u32", vVYh, S(47), t0))
    a(salu(f"s_lshl_b32 s47, {sW}, 13", rd=[sW]))
    a(valu("v_add_u32", vDMA0, S(47), vLANE16))
    a(valu("v_add_u32", vDMA1, 4096, vDMA0))
    a(valu("v_and_b32", t0, 31, V(0)))
    a(valu("v_lshlrev_b32", t0, 9, t0))
    a(valu("v_lshl_add_u32", t0, t2, 4, t0))
    a(salu(f"s_lshl_b32 s47, {sW}, 14", rd=[sW]))
    a(valu("v_add_u32", vQOFF, S(47), t0))
    a(salu(f"s_lshr_b32 s47, {sW}, 1", rd=[sW]))
    a(salu("s_lshl_b32 s47, s47, 14"))
    a(salu("s_add_u32 s47, s47, 65536"))
    a(valu("v_add_u32", vQOFFB, S(47), t0))
    a(salu(f"s_mul_i32 {sKM0}, {sW}, {8 * PIECE}", rd=[sW], wr=[sKM0]))
    a(salu(f"s_add_u32 {sVM0}, {sKM0}, {VBUF[0]}", rd=[sKM0], wr=[sVM0]))
    a(salu(f"s_mov_b32 {sKOFF}, 0", wr=[sKOFF]))
    a(salu(f"s_mov_b32 {sVOFF}, 0", wr=[sVOFF]))
    a(salu(f"s_mov_b32 {sDELTA}, {TILE}", wr=[sDELTA]))
    a(salu(f"s_mov_b32 {sC}, {f32(CSCALE)}", wr=[sC]))
    a(salu(f"s_mov_b32 {sFLAG}, 0", wr=[sFLAG]))
    a(salu(f"s_mov_b32 {sIT}, 0", wr=[sIT]))
    a(raw("s_waitcnt lgkmcnt(0)", 'salu'))
    for srd, ptr, off, size in ((sK, 38, 's34', 262144), (sQ, 36, 's35', 98304), (sV, 40, 's34', 262144), (sO, 42, 's35', 98304)):
        a(salu(f"s_add_u32 s{srd.lo}, s{ptr}, {off}", wr=[srd[0]]))
        a(salu(f"s_addc_u32 s{srd.lo + 1}, s{ptr + 1}, 0", wr=[srd[1]]))
        a(salu(f"s_mov_b32 s{srd.lo + 2}, {size}", wr=[srd[2]]))
        a(salu(f"s_mov_b32 s{srd.lo + 3}, 0x20000", wr=[srd[3]]))
    for j in range(8):
        o += dma('K', j, 'K0')
    a(salu(f"s_add_u32 {sKOFF}, {sKOFF}, 32768", rd=[sKOFF], wr=[sKOFF]))
    a(salu(f"s_add_u32 {sKM0}, {sKM0}, {sDELTA}", rd=[sKM0], wr=[sKM0]))
    for s in range(16):
        a(Inst(f"buffer_load_dwordx4 {QA[s]}, {vQOFF}, {sQ}, 0 offen offset:{32 * s}", 'vmem', rd=[vQOFF, sQ], wr=[QA[s]]))
        a(Inst(f"buffer_load_dwordx4 {QB[s]}, {vQOFFB}, {sQ}, 0 offen offset:{32 * s}", 'vmem', rd=[vQOFFB, sQ], wr=[QB[s]]))
    for j in range(8):
        o += dma('V', j, 'Vcur')
    a(salu(f"s_add_u32 {sVOFF}, {sVOFF}, 32768", rd=[sVOFF], wr=[sVOFF]))
    a(salu(f"s_add_u32 {sVM0}, {sVM0}, {sDELTA}", rd=[sVM0], wr=[sVM0]))
    for j in range(8):
        o += dma('K', j, 'Knext')
    a(salu(f"s_add_u32 {sKOFF}, {sKOFF}, 32768", rd=[sKOFF], wr=[sKOFF]))
    a(salu(f"s_sub_u32 {sKM0}, {sKM0}, {sDELTA}", rd=[sKM0], wr=[sKM0]))
    for who in 'AB':
        a(valu("v_mov_b32", vNEG[who], "0x7f800000"))
        a(valu("v_mov_b32", vTHR[who], "0xff800000"))
        a(valu("v_mov_b32", vL[who], 0))
        a(valu("v_mov_b32", vAL[who], 1.0))
    for dt in range(8):
        for r in range(16):
            a(valu("v_mov_b32", OA[dt][r], 0))
            a(valu("v_accvgpr_write_b32", OB[dt][r], 0))
    a(wait(tags=['K0']))
    a(barrier())
    o += stamp(1)
    return o


def epilogue():
    o = []
    a = o.append
    t = [V(24 + i) for i in range(16)]
    a(nop(15))
    for who in 'AB':
        a(valu("v_mov_b32", vT0, vL[who]))
        a(nop(1))
        a(Inst(f"v_permlane32_swap_b32 {vT0}, {vL[who]}", 'valu', rd=[vT0, vL[who]], wr=[vT0, vL[who]], perm=True))
        a(nop(1))
        a(valu("v_add_f32", vL[who], vL[who], vT0))
    wr, rdp = V(40), V(41)
    a(salu(f"s_mul_i32 s44, {sW}, 16896", rd=[sW]))
    a(salu(f"s_xor_b32 s45, {sW}, 1", rd=[sW]))
    a(salu("s_mul_i32 s45, s45, 16896"))
    a(valu("v_add_u32", wr, S(44), vLANE16))
    a(valu("v_add_u32", rdp, S(45), vLANE16))
    for dt in range(4, 8):
        for k in range(4):
            a(ds_write("ds_write_b128", wr, OB[dt].sub(4 * k, 4), ((dt - 4) * 4 + k) * 1024))
    ml = V(42, 2)
    a(valu("v_mov_b32", ml[0], vNEG['B']))
    a(valu("v_mov_b32", ml[1], vL['B']))
    a(valu("v_lshrrev_b32", V(44), 1, vLANE16))
    a(valu("v_add_u32", V(45), S(45), V(44)))
    a(valu("v_add_u32", V(44), S(44), V(44)))
    a(ds_write("ds_write_b64", V(44), ml, 16384))
    inv = V(46)
    a(valu("v_rcp_f32", inv, vL['A'], trans=True))
    ol, oh = V(47), V(48)
    a(salu(f"s_lshl_b32 s46, {sP}, 8", rd=[sP]))
    a(valu("v_add_u32", ol, S(46), vQOFF))
    a(valu("v_subrev_u32", oh, S(46), vQOFF))
    pk = [V(56 + 4 * i, 4) for i in range(4)]
    n = 0
    for dt in range(8):
        for k in range(2):
            p = pk[n % 4]; n += 1
            for j in range(8):
                x = OA[dt][8 * k + j]
                a(valu("v_mul_f32", x, x, inv))
            for j in range(4):
                a(valu("v_cvt_pk_bf16_f32", p[j], OA[dt][8 * k + 2 * j], OA[dt][8 * k + 2 * j + 1]))
            st = Inst(f"buffer_store_dwordx4 {p}, {ol if dt < 4 else oh}, {sO}, 0 offen offset:{64 * dt + 32 * k}", 'vmem',
                      rd=[p, ol if dt < 4 else oh, sO], wr=[])
            st.store_data = p.regs()
            a(st)
        if dt == 1:
            a(wait(lgkm0=True))
            a(barrier())
    pml = V(50, 2)
    a(ds_read("ds_read_b64", pml, V(45), 16384))
    for dt in range(4):
        for k in range(4):
            a(ds_read("ds_read_b128", OA[dt].sub(4 * k, 4), rdp, (dt * 4 + k) * 1024))
    nm, fo, fp = V(52), V(53), V(54)
    a(valu("v_min_f32", nm, vNEG['B'], pml[0]))
    a(valu("v_sub_f32", fo, nm, vNEG['B']))
    a(valu("v_sub_f32", fp, nm, pml[0]))
    a(valu("v_exp_f32", fo, fo, trans=True))
    a(valu("v_exp_f32", fp, fp, trans=True))
    a(nop(0))
    a(valu("v_mul_f32", nm, vL['B'], fo))
    a(valu("v_fma_f32", nm, pml[1], fp, nm))
    a(valu("v_rcp_f32", nm, nm, trans=True))
    a(nop(0))
    a(valu("v_mul_f32", fo, fo, nm))
    a(valu("v_mul_f32", fp, fp, nm))
    ob = V(55)
    a(valu("v_add_u32", ob, S(46), vQOFFB))
    for dt in range(4):
        for k in range(2):
            p = pk[n % 4]; n += 1
            for j in range(8):
                a(valu("v_accvgpr_read_b32", t[j], OB[dt][8 * k + j]))
            for j in range(8):
                a(valu("v_mul_f32", t[j], t[j], fo))
            for j in range(8):
                a(valu("v_fma_f32", t[j], OA[dt][8 * k + j], fp, t[j]))
            for j in range(4):
                a(valu("v_cvt_pk_bf16_f32", p[j], t[2 * j], t[2 * j + 1]))
            st = Inst(f"buffer_store_dwordx4 {p}, {ob}, {sO}, 0 offen offset:{64 * dt + 32 * k}", 'vmem', rd=[p, ob, sO], wr=[])
            st.store_data = p.regs()
            a(st)
    o += stamp_out()
    a(label("L_end"))
    a(Inst("s_endpgm", 'branch'))
    return o


def retag(insts, m):
    pass


def main():
    pro = prologue()
    b0 = Body('p', qk=True, pv=False, head=True, tail=False, next_qk=True, dmaV=False, dmaK=True, first=True)
    bl = Body('l', qk=True, pv=True, head=True, tail=True, next_qk=True, dmaV=True, dmaK=True)
    bf = Body('f', qk=False, pv=True, head=False, tail=True, next_qk=None, dmaV=False, dmaK=False)
    epi = epilogue()
    b0.insts.append(salu(f"s_mov_b32 {sFLAG}, 0", wr=[sFLAG]))
    b0.insts.append(salu(f"s_sub_u32 {sDELTA}, 0, {sDELTA}", rd=[sDELTA], wr=[sDELTA]))
    b0.insts += stamp(2)
    bf.insts += stamp(10)
    if opts['stamp']:
        b0.insts += [raw("s_memrealtime s[60:61]", 'smem'), raw("s_waitcnt lgkmcnt(0)", 'salu'), salu("s_mov_b32 s78, s60")]
        bf.insts += [raw("s_memrealtime s[60:61]", 'smem'), raw("s_waitcnt lgkmcnt(0)", 'salu'), salu("s_mov_b32 s79, s60")]
    loop_head = [label("L_loop")]
    loop_tail = stamp_shift() + [salu(f"s_sub_u32 {sDELTA}, 0, {sDELTA}", rd=[sDELTA], wr=[sDELTA]),
                 salu(f"s_add_u32 {sIT}, {sIT}, 1", rd=[sIT], wr=[sIT]),
                 salu(f"s_cmp_lt_u32 {sIT}, {NSTEP - 1}"),
                 Inst("s_cbranch_scc1 L_loop", 'branch')]
    dyn = []
    dyn += pro + b0.insts
    for it in range(NSTEP - 1):
        dyn.append(Inst("", 'retag'))
        dyn += loop_head + bl.insts + loop_tail
    dyn.append(Inst("", 'retag'))
    dyn += bf.insts + epi
    analyze2(dyn)
    analyze2(dyn)
    rare = b0.rare(True, False) + bl.rare(True, True) + bf.rare(False, True)
    hdr = open('standalone__gqa_softmax__near_ridge.s.ref').read().split('\n')
    hdr = [l for l in hdr if l.startswith(';') and '@launch' not in l and 'Override' not in l and 'grid=ceil' not in l]
    txt = "\n".join(hdr) + f"\n; @launch grid=(256,1,1) block=(256,1,1) lds={LDS_BYTES}\n"
    txt += f""".amdgcn_target "amdgcn-amd-amdhsa--gfx950"
.text
.globl {KNAME}
.p2align 8
.type {KNAME},@function
{KNAME}:
"""
    txt += emit(pro) + "\n" + emit(b0.insts) + "\n" + emit(loop_head + bl.insts + loop_tail) + "\n" + emit(bf.insts) + "\n" + emit(epi) + "\n"
    txt += emit(rare) + "\n"
    txt += f""".section .rodata,"a"
.p2align 6
.amdhsa_kernel {KNAME}
  .amdhsa_next_free_vgpr 512
  .amdhsa_next_free_sgpr 102
  .amdhsa_accum_offset 256
  .amdhsa_group_segment_fixed_size 0
  .amdhsa_kernarg_size 48
  .amdhsa_user_sgpr_count 2
  .amdhsa_user_sgpr_kernarg_segment_ptr 1
  .amdhsa_system_sgpr_workgroup_id_x 1
.end_amdhsa_kernel
"""
    open(sys.argv[1], 'w').write(txt)


def analyze2(dyn):
    import fw
    seq = []
    gen = 0
    for ins in dyn:
        if ins.kind == 'retag':
            gen += 1
            continue
        seq.append((ins, gen))
    wrapped = []
    for ins, g in seq:
        if ins.kind == 'vmem' and ins.tag in ('Vnew', 'Knew'):
            w = Inst(ins.text, 'vmem', cost=ins.cost)
            w.rd, w.wr, w.dma = ins.rd, ins.wr, ins.dma
            w.tag = ('V', g + 1) if ins.tag == 'Vnew' else ('K', g + 1)
            w.orig = ins
            wrapped.append(w)
        elif ins.kind == 'vmem' and ins.tag in ('Vcur', 'Knext'):
            w = Inst(ins.text, 'vmem', cost=ins.cost)
            w.rd, w.wr, w.dma = ins.rd, ins.wr, ins.dma
            w.tag = ('V', 1) if ins.tag == 'Vcur' else ('K', 0)
            w.orig = ins
            wrapped.append(w)
        elif ins.kind == 'wait' and ins.wait_tags and ins.wait_tags[0] in ('Vcur', 'Knext'):
            w = wait(tags=[('V', g) if ins.wait_tags[0] == 'Vcur' else ('K', g)], lgkm0=ins.wait_lgkm0)
            w.orig = ins
            w.res_vm = None
            wrapped.append(w)
        else:
            wrapped.append(ins)
    fw.analyze(wrapped)
    for w in wrapped:
        o = getattr(w, 'orig', None)
        if o is not None:
            if w.kind == 'wait':
                if w.res_vm is not None:
                    o.res_vm = w.res_vm if o.res_vm is None else min(o.res_vm, w.res_vm)
            else:
                o.pre_nop = max(o.pre_nop, w.pre_nop)
                if w.pre_vm is not None:
                    o.pre_vm = w.pre_vm
                if w.pre_lgkm is not None:
                    o.pre_lgkm = w.pre_lgkm


main()
```

```python
import sys
KNAME = "standalone__gqa_softmax__near_ridge_kernel"
out = sys.argv[1]
o = dict(shape=32, iters=8, waves=4, chain=1, nv=146, ne=48, nl=96, ns=60)
for a in sys.argv[2:]:
    k, v = a.split('=')
    o[k] = int(v)
W = o['waves']
L = []
a = L.append
NV = 256 if W == 4 else 128
a("s_load_dwordx4 s[36:39], s[0:1], 0")
a("s_load_dwordx2 s[40:41], s[0:1], 40")
a("s_memrealtime s[60:61]")
a("s_waitcnt lgkmcnt(0)")
a("s_mov_b32 s76, s60")
a("s_mov_b32 s4, s36\ns_mov_b32 s5, s37\ns_mov_b32 s6, 25165824\ns_mov_b32 s7, 0x20000")
a("s_mov_b32 s8, s38\ns_mov_b32 s9, s39\ns_mov_b32 s10, 16777216\ns_mov_b32 s11, 0x20000")
a("v_lshrrev_b32 v2, 6, v0\ns_nop 1\nv_readfirstlane_b32 s28, v2")
a("v_lshlrev_b32 v1, 4, v0")
a("s_lshl_b32 s3, s2, 16")
for i in range(8):
    a(f"buffer_load_dwordx4 v[{32+4*i}:{35+4*i}], v1, s[8:11], s3 offen offset:0")
    a("s_add_u32 s3, s3, 8192")
a("s_lshl_b32 s3, s2, 16")
for i in range(8):
    a(f"buffer_load_dwordx4 v[{64+4*i}:{67+4*i}], v1, s[4:7], s3 offen offset:0")
    a("s_add_u32 s3, s3, 8192")
for i in range(128):
    a(f"v_accvgpr_write_b32 a{i}, 0")
for i in range(8, 32):
    a(f"v_mov_b32 v{i}, 0.5")
a("v_and_b32 v3, 63, v0\nv_lshlrev_b32 v3, 4, v3")
a("s_waitcnt vmcnt(0)")
for i in range(8):
    a(f"ds_write_b128 v1, v[{32+4*i}:{35+4*i}] offset:{8192*i}")
a("s_waitcnt lgkmcnt(0)")
a("s_barrier")
a("s_memtime s[60:61]\ns_waitcnt lgkmcnt(0)\ns_mov_b32 s64, s60\ns_mov_b32 s65, s60\ns_mov_b32 s66, s60")
a("s_memrealtime s[60:61]\ns_waitcnt lgkmcnt(0)\ns_mov_b32 s78, s60")
a("s_mov_b32 s21, 0")
a("L_loop:")
n = (96 if o['shape'] == 32 else 192) * 4 // W
sc = 4 / W
fill = []
kinds = [('v', int(o['nv'] * sc)), ('e', int(o['ne'] * sc)), ('l', int(o['nl'] * sc)), ('s', int(o['ns'] * sc))]
gaps = [[] for _ in range(n)]
for ki, (k, cnt) in enumerate(kinds):
    for j in range(cnt):
        g = int((j + 0.25 * ki) * n / cnt) % n
        gaps[g].append(k)
cv = cl = 0
for i in range(n):
    ch = o['chain']
    fa, fb = i % 8, (i // ch * 3 + 1) % 8
    A = f"v[{32+4*fa}:{35+4*fa}]"
    B = f"v[{64+4*fb}:{67+4*fb}]"
    if o['shape'] == 32:
        k = (i // ch) % 8
        D = f"a[{16*k}:{16*k+15}]"
        a(f"v_mfma_f32_32x32x16_bf16 {D}, {A}, {B}, {D}")
    else:
        k = (i // ch) % 32
        D = f"a[{4*k}:{4*k+3}]"
        a(f"v_mfma_f32_16x16x32_bf16 {D}, {A}, {B}, {D}")
    for k in gaps[i]:
        if k == 'v':
            r = 8 + cv % 20; cv += 1
            a(f"v_fma_f32 v{r}, v{r+1}, v{r+2}, v{64 + cv % 32}")
        elif k == 'e':
            r = 8 + cv % 20; cv += 1
            a(f"v_exp_f32 v{r}, v{64 + cv % 32}")
        elif k == 'l':
            tgt = (fa + 4) % 8
            if cl % 3 == 0:
                a(f"ds_read_b128 v[{32+4*tgt}:{35+4*tgt}], v3 offset:{1024*(cl % 64)}")
            else:
                a(f"ds_read_b64_tr_b16 v[{32+4*tgt+2*(cl%2)}:{33+4*tgt+2*(cl%2)}], v3 offset:{1024*(cl % 64)}")
            cl += 1
        else:
            a("s_waitcnt lgkmcnt(6)")
a("s_memtime s[60:61]")
for k in range(9, 3, -1):
    a(f"s_mov_b32 s{64+k}, s{63+k}")
a("s_waitcnt lgkmcnt(0)\ns_mov_b32 s67, s60")
a("s_add_u32 s21, s21, 1")
a(f"s_cmp_lt_u32 s21, {o['iters']}")
a("s_cbranch_scc1 L_loop")
a("s_memtime s[60:61]\ns_waitcnt lgkmcnt(0)\ns_mov_b32 s74, s60\ns_mov_b32 s75, s60")
a("s_memrealtime s[60:61]\ns_waitcnt lgkmcnt(0)\ns_mov_b32 s79, s60\ns_mov_b32 s77, s60")
a("s_mov_b32 s42, 0x100000\ns_mov_b32 s43, 0x20000")
a("s_nop 15")
a("v_mov_b32 v4, v8")
for k in range(16):
    a(f"v_writelane_b32 v4, s{64+k}, {k}")
a("s_cmp_ge_u32 s28, 4\ns_cbranch_scc1 L_e")
a("s_lshl_b32 s44, s2, 2\ns_add_u32 s44, s44, s28\ns_lshl_b32 s44, s44, 8")
a("v_lshrrev_b32 v1, 2, v3\ns_nop 4")
a("buffer_store_dword v4, v1, s[40:43], s44 offen")
a("L_e:\ns_endpgm")
txt = f"""; @launch grid=(256,1,1) block=({64*W},1,1) lds=131072
.amdgcn_target "amdgcn-amd-amdhsa--gfx950"
.text
.globl {KNAME}
.p2align 8
.type {KNAME},@function
{KNAME}:
""" + "\n".join(L) + f"""
.section .rodata,"a"
.p2align 6
.amdhsa_kernel {KNAME}
  .amdhsa_next_free_vgpr {2*NV}
  .amdhsa_next_free_sgpr 102
  .amdhsa_accum_offset {NV}
  .amdhsa_group_segment_fixed_size 0
  .amdhsa_kernarg_size 48
  .amdhsa_user_sgpr_count 2
  .amdhsa_user_sgpr_kernarg_segment_ptr 1
  .amdhsa_system_sgpr_workgroup_id_x 1
.end_amdhsa_kernel
"""
open(out, 'w').write(txt)
```

```python
import sys, math, struct
from fw import *
import fw

KNAME = "standalone__gqa_softmax__near_ridge_kernel"
PIECE = 1040
HALF = 16 * PIECE
TILE = 32 * PIECE
VBUF0 = 2 * TILE
SPARE = 4 * TILE
LDS_BYTES = 163840
SLABW = 7680
CSCALE = math.log2(math.e) / 16.0
THR = 8.0 / CSCALE

opts = dict(cap=20, dist=6, bS=89, bM=41, stamp=0, nstep=8, pf=0, stflag='', lat=3, pk=1)
for a in sys.argv[2:]:
    k, v = a.split('=')
    opts[k] = int(v) if v.lstrip('-').isdigit() else v
NSTEP = opts['nstep']


def f32(x):
    return "0x%08x" % struct.unpack('<I', struct.pack('<f', x))[0]


vKX, vKY = V(1), V(2)
vVXl, vVXh, vVYl, vVYh = V(3), V(4), V(5), V(6)
vDMA0, vDMA1 = V(7), V(8)
vNEG = {'A': V(9), 'B': V(10)}
vTHR = {'A': V(11), 'B': V(12)}
vL = {'A': V(13), 'B': V(14)}
vAL = {'A': V(15), 'B': V(16)}
vMX = {'A': V(17), 'B': V(18)}
vT0, vT1 = V(19), V(20)
vX0, vX1 = V(21), V(22)
vLANE16 = V(23)
sAX, sB, sAY = V(24, 16), V(40, 16), V(56, 16)
pAX, pB, pAY = V(72, 8), V(80, 8), V(88, 8)
FR = [V(96 + 4 * i, 4) for i in range(8)]
OA = [V(128 + 16 * i, 16) for i in range(8)]
OB = [A(16 * i, 16) for i in range(8)]
QA = [A(128 + 4 * i, 4) for i in range(16)]
QB = [A(192 + 4 * i, 4) for i in range(16)]
sQ, sK, sV, sO = S(4, 4), S(8, 4), S(12, 4), S(16, 4)
sC = S(20)
sIT = S(21)
sKOFF, sVOFF = S(22), S(23)
sKM0, sVM0 = S(24), S(25)
sDELTA = S(26)
sFLAG = S(27)
sW, sP = S(28), S(29)


def dma(kind, j, tag):
    base, srd, off = (sKM0, sK, sKOFF) if kind == 'K' else (sVM0, sV, sVOFF)
    m0 = salu(f"s_add_u32 m0, {base}, {j * PIECE - (j % 4) * 1024}", rd=[base], wr=['m0', 'scc'])
    voff = vDMA0 if j < 4 else vDMA1
    ld = Inst(f"buffer_load_dwordx4 {voff}, {srd}, {off} offen offset:{(j % 4) * 1024} lds", 'vmem',
              rd=[voff, srd, off, 'm0'], wr=[], dma=True, tag=tag, cost=8)
    return [m0, ld]


def adv(kind, sign=1):
    off, m0 = (sKOFF, sKM0) if kind == 'K' else (sVOFF, sVM0)
    o = [salu(f"s_add_u32 {off}, {off}, 32768", rd=[off], wr=[off, 'scc']),
         salu(f"s_{'add' if sign > 0 else 'sub'}_u32 {m0}, {m0}, {sDELTA}", rd=[m0, sDELTA], wr=[m0, 'scc'])]
    if NSTEP > 8:
        o.append(salu(f"s_and_b32 {off}, {off}, 0x3ffff", rd=[off], wr=[off, 'scc']))
    return o


def kread(fr, a, s):
    return [ds_read("ds_read_b128", fr, a, 32 * s)]


def vread(fr, a, t, dt):
    return [ds_read("ds_read_b64_tr_b16", fr.sub(2 * e, 2), a, PIECE * (2 * t + e) + 64 * dt) for e in range(2)]


def expblock(sreg, who, after, before):
    seq = []
    for r in range(16):
        x = sreg[r]
        seq.append((valu("v_fma_f32", x, x, sC, vNEG[who]), after, before))
        seq.append((valu("v_exp_f32", x, x, trans=True), after, before))
        if r >= 1:
            seq.append((valu("v_add_f32", vL[who], vL[who], sreg[r - 1]), after, before))
    seq.append((valu("v_add_f32", vL[who], vL[who], sreg[15]), after, before))
    return seq


def cvt(preg, sreg, t, after, before):
    return [(valu("v_cvt_pk_bf16_f32", preg[4 * t + k], sreg[8 * t + 2 * k], sreg[8 * t + 2 * k + 1]), after, before) for k in range(4)]


def maxtree(dst, regs, after, before, cont=False):
    out = []
    regs = list(regs)
    if not cont:
        out.append((valu("v_max3_f32", dst, regs[0], regs[1], regs[2]), after, before))
        regs = regs[3:]
    while len(regs) >= 2:
        out.append((valu("v_max3_f32", dst, dst, regs[0], regs[1]), after, before))
        regs = regs[2:]
    if regs:
        out.append((valu("v_max_f32", dst, dst, regs[0]), after, before))
    return out


def check(who, name, after, before):
    c = Inst(f"v_cmp_gt_f32 vcc, {vMX[who]}, {vTHR[who]}", 'valu', rd=[vMX[who], vTHR[who]], wr=['vcc'])
    b = Inst(f"s_cbranch_vccnz L_rare_{who}_{name}", 'branch', rd=[])
    l = label(f"L_back_{who}_{name}")
    return [(c, after, before), ([b, l], after, before)]


def perm(a, b):
    return Inst(f"v_permlane32_swap_b32 {a}, {b}", 'valu', rd=[a, b], wr=[a, b], perm=True)


def first_max(who, after, before):
    mx = vMX[who]
    return [(valu("v_mov_b32", vT0, mx), after, before), (perm(vT0, mx), after, before),
            (valu("v_max_f32", mx, mx, vT0), after, before),
            (valu("v_add_f32", vTHR[who], f32(THR), mx), after, before),
            (valu("v_mul_f32", vNEG[who], f32(-CSCALE), mx), after, before)]


def cost(x):
    return sum(i.cost for i in x) if isinstance(x, list) else x.cost


def schedule(mf, pre, gaps, post, streams, cap):
    NM = len(mf)
    for st in streams:
        dl = NM - 1
        acc = 0
        new = []
        for it in reversed(st):
            ins, a, b = it
            if b - 1 < dl:
                dl = b - 1
                acc = 0
            acc += cost(ins)
            while acc > 12 and dl > -1:
                dl -= 1
                acc -= 12
            new.append((ins, a, b, max(dl, a)))
        st[:] = list(reversed(new))
    out = []
    heads = [0] * len(streams)
    for g in range(-1, NM):
        if g >= 0:
            out.append(mf[g])
        used = 0
        for x in pre[g]:
            out.append(x); used += x.cost
        for _, f, reads in sorted(gaps[g], key=lambda z: z[1]):
            out += reads; used += 4 * len(reads)
        for x in post[g]:
            out.append(x); used += x.cost
        if g + 1 < NM:
            used += 2
        while True:
            best = None
            for si, st in enumerate(streams):
                if heads[si] < len(st):
                    ins, a, b, dl = st[heads[si]]
                    if a <= g:
                        if best is None or dl < best[0]:
                            best = (dl, si)
            if best is None:
                break
            dl, si = best
            ins, a, b, _ = streams[si][heads[si]]
            forced = (g == NM - 1) or any(it[2] - 1 <= g for it in streams[si][heads[si]:])
            if g == -1 and NM > 0 and not forced:
                break
            if used + cost(ins) > cap and not forced:
                break
            if isinstance(ins, list):
                out += ins
            else:
                out.append(ins)
            used += cost(ins)
            heads[si] += 1
    for si, st in enumerate(streams):
        assert heads[si] == len(st), (si, heads[si], len(st))
    return out


NPRE = 4


class Body:
    def __init__(self, name, last=False):
        self.name = name
        qk = not last
        mf = []
        frags = []
        idx = {}

        def add(m, key):
            idx[key] = len(mf)
            mf.append(m)

        def newfrag(kind, *args):
            f = len(frags)
            frags.append([kind, args, len(mf), None])
            return FR[f % 8], f

        if qk:
            for s in range(16):
                fr, f = newfrag('K', vKX, s)
                add(mfma(sAX, fr, QA[s], sAX if s else 0), ('qkxa', s))
                add(mfma(sB, fr, QB[s], sB if s else 0), ('qkxb', s))
                frags[f][3] = len(mf) - 1
            for s in range(16):
                fr, f = newfrag('K', vKY, s)
                add(mfma(sAY, fr, QA[s], sAY if s else 0), ('qky', s))
                frags[f][3] = len(mf) - 1
        nkf = len(frags)
        for t in range(2):
            for dt in range(8):
                fr, f = newfrag('V', vVXl if dt < 4 else vVXh, t, dt)
                add(mfma(OA[dt], fr, pAX.sub(4 * t, 4), OA[dt]), ('pvxa', t, dt))
                add(mfma(OB[dt], fr, pB.sub(4 * t, 4), OB[dt]), ('pvxb', t, dt))
                frags[f][3] = len(mf) - 1
        order = [(t, dt) for t in range(2) for dt in range(8)] if not last else [(t, dt) for dt in range(8) for t in range(2)]
        for t, dt in order:
            fr, f = newfrag('V', vVYl if dt < 4 else vVYh, t, dt)
            add(mfma(OA[dt], fr, pAY.sub(4 * t, 4), OA[dt]), ('pvy', t, dt))
            frags[f][3] = len(mf) - 1
        nf = len(frags)
        NM = len(mf)
        gaps = {g: [] for g in range(-1, NM)}
        pre = {g: [] for g in range(-1, NM)}
        post = {g: [] for g in range(-1, NM)}
        DIST = opts['dist']

        def fragreads(kind, args, fr):
            return kread(fr, *args) if kind == 'K' else vread(fr, *args)

        gM = (frags[nkf][2] - (48 - opts['bM'])) if qk else -1
        gS = NM - (96 - opts['bS'])
        for f, (kind, args, fu, lu) in enumerate(frags):
            if f < NPRE and qk:
                continue
            g = fu - DIST
            if f >= 8:
                g = max(g, frags[f - 8][3])
            g = max(g, -1)
            if kind == 'K':
                g = min(g, gM - 2) if f >= 8 and gM - 2 >= frags[f - 8][3] else g
                assert g < gM
            if kind == 'V':
                g = max(g, gM)
                if qk:
                    lim = gS - 2
                    if g > lim:
                        g = max(lim, frags[f - 8][3])
                    assert g < gS
            gaps[g].append(('lds', f, fragreads(kind, args, FR[f % 8])))
        for f, (kind, args, fu, lu) in enumerate(frags):
            if fu == lu and f % 2 == 0 and f + 1 < nf and frags[f + 1][0] == kind:
                mf[fu].extra_wait = [FR[(f + 1) % 8]]
        if qk:
            pre[gM] += [wait(tags=['Vcur'], lgkm0=True), barrier(),
                        valu("v_add_u32", vKX, sDELTA, vKX), valu("v_add_u32", vKY, sDELTA, vKY)]
            pre[gS] += [wait(tags=['Knext'], lgkm0=True), barrier()]
            post[gS] += [valu("v_subrev_u32", a, sDELTA, a) for a in (vVXl, vVXh, vVYl, vVYh)]
            for f in range(NPRE):
                g = max(gS, frags[nf - 8 + f][3])
                g = min(max(g, gS + f), NM - 1)
                gaps[g].append(('lds', 1000 + f, kread(FR[f], vKX, f)))
            for j in range(8):
                m0, ld = dma('V', j, 'Vnew')
                post[2 * j].append(m0)
                post[2 * j + 1].append(ld)
            post[16] += adv('V')
            for j in range(8):
                m0, ld = dma('K', j, 'Knew')
                post[gM + 1 + 2 * j].append(m0)
                post[gM + 2 + 2 * j].append(ld)
            post[gM + 17] += adv('K')
        else:
            pre[gM] += [wait(vm0=True, lgkm0=True), barrier()]

        def pos(key, default):
            return idx.get(key, default)

        streams = []
        LAT = opts['lat']
        END = NM
        st = []
        fl = [salu(f"s_cmp_lg_u32 {sFLAG}, 0", rd=[sFLAG], wr=['scc']),
              Inst(f"s_cbranch_scc1 L_resc_{name}", 'branch'), label(f"L_rescback_{name}")]
        b_resc = min(pos(('pvxa', 0, 0), END), pos(('qkxb', 15), END))
        st.append((fl, -1 if not qk else 1, b_resc))
        bY0 = min(pos(('qky', 0), END), pos(('pvy', 0, 0), END) - 1)
        e = expblock(sAY, 'A', -1, bY0)
        half = [k for k, it in enumerate(e) if it[0].text.startswith("v_add_f32")]
        st += e[:half[7] + 1] + cvt(pAY, sAY, 0, -1, bY0) + e[half[7] + 1:] + cvt(pAY, sAY, 1, -1, bY0)
        streams.append(st)
        if qk:
            aB = pos(('qkxb', 15), -1) + LAT
            aX = pos(('qkxa', 15), -1) + LAT
            aY = pos(('qky', 15), -1) + LAT
            st = maxtree(vMX['B'], [sB[r] for r in range(16)], aB, END) + check('B', name, aB, END)
            st += expblock(sB, 'B', aB, END)
            st += cvt(pB, sB, 0, pos(('pvxb', 0, 7), -1), END) + cvt(pB, sB, 1, pos(('pvxb', 1, 7), -1), END)
            streams.append(st)
            st = maxtree(vMX['A'], [sAX[r] for r in range(16)], aX, END)
            st += maxtree(vMX['A'], [sAY[r] for r in range(16)], aY, END, cont=True) + check('A', name, aY, END)
            st += expblock(sAX, 'A', aY, END)
            st += cvt(pAX, sAX, 0, pos(('pvxa', 0, 7), -1), END) + cvt(pAX, sAX, 1, pos(('pvxa', 1, 7), -1), END)
            streams.append(st)
        else:
            epi_streams(streams, idx, NM)
        self.insts = schedule(mf, pre, gaps, post, streams, opts['cap'])

    def rare(self, head, tail):
        n = self.name
        out = []
        if head:
            for who in 'AB':
                mx = vMX[who]
                out += [label(f"L_rare_{who}_{n}"),
                        valu("v_mov_b32", vT0, mx), nop(1), perm(vT0, mx), nop(1),
                        valu("v_max_f32", mx, mx, vT0),
                        valu("v_subrev_f32", vT0, f32(THR), vTHR[who]),
                        valu("v_max_f32", vT0, vT0, mx),
                        valu("v_add_f32", vTHR[who], f32(THR), vT0),
                        valu("v_mul_f32", vT0, f32(-CSCALE), vT0),
                        valu("v_sub_f32", vT1, vT0, vNEG[who]),
                        valu("v_exp_f32", vAL[who], vT1, trans=True),
                        valu("v_mov_b32", vNEG[who], vT0),
                        nop(0),
                        valu("v_mul_f32", vL[who], vL[who], vAL[who]),
                        salu(f"s_or_b32 {sFLAG}, {sFLAG}, {1 if who == 'A' else 2}"),
                        Inst(f"s_branch L_back_{who}_{n}", 'branch')]
        if tail:
            out += [label(f"L_resc_{n}"), nop(15),
                    salu(f"s_bitcmp1_b32 {sFLAG}, 0"), Inst(f"s_cbranch_scc0 L_rescB_{n}", 'branch')]
            for dt in range(8):
                for r in range(16):
                    out.append(valu("v_mul_f32", OA[dt][r], OA[dt][r], vAL['A']))
            out += [label(f"L_rescB_{n}"),
                    salu(f"s_bitcmp1_b32 {sFLAG}, 1"), Inst(f"s_cbranch_scc0 L_rescE_{n}", 'branch')]
            for dt in range(8):
                for r in range(0, 16, 2):
                    out += [valu("v_accvgpr_read_b32", vT0, OB[dt][r]), valu("v_accvgpr_read_b32", vT1, OB[dt][r + 1]),
                            valu("v_mul_f32", vT0, vT0, vAL['B']), valu("v_mul_f32", vT1, vT1, vAL['B']),
                            valu("v_accvgpr_write_b32", OB[dt][r], vT0), valu("v_accvgpr_write_b32", OB[dt][r + 1], vT1)]
            out += [label(f"L_rescE_{n}"), salu(f"s_mov_b32 {sFLAG}, 0"), nop(3),
                    Inst(f"s_branch L_rescback_{n}", 'branch')]
        return out


def stamp(k):
    if not opts['stamp']:
        return []
    return [raw("s_memtime s[60:61]", 'smem'), raw("s_waitcnt lgkmcnt(0)", 'salu'), salu(f"s_mov_b32 s{64 + k}, s60")]


def rstamp(k):
    if not opts['stamp']:
        return []
    return [raw("s_memrealtime s[60:61]", 'smem'), raw("s_waitcnt lgkmcnt(0)", 'salu'), salu(f"s_mov_b32 s{64 + k}, s60")]


def stamp_shift():
    if not opts['stamp']:
        return []
    o = [raw("s_memtime s[60:61]", 'smem')]
    for k in range(9, 3, -1):
        o.append(salu(f"s_mov_b32 s{64 + k}, s{63 + k}"))
    o += [raw("s_waitcnt lgkmcnt(0)", 'salu'), salu("s_mov_b32 s67, s60")]
    return o


def stamp_out():
    if not opts['stamp']:
        return []
    o = [raw("s_waitcnt vmcnt(0)", 'salu')] + stamp(11) + rstamp(13)
    o += [raw("s_load_dwordx2 s[60:61], s[0:1], 40", 'smem'), raw("s_waitcnt lgkmcnt(0)", 'salu'),
          salu("s_mov_b32 s62, 0x100000"), salu("s_mov_b32 s63, 0x20000")]
    for k in range(32):
        o.append(raw(f"v_writelane_b32 v0, s{64 + k}, {k}", 'valu'))
    o += [salu(f"s_lshl_b32 s44, s2, 2"), salu(f"s_add_u32 s44, s44, {sW}"), salu("s_lshl_b32 s44, s44, 8"),
          valu("v_lshrrev_b32", V(1), 2, vLANE16), nop(4),
          raw("buffer_store_dword v0, v1, s[60:63], s44 offen", 'vmem')]
    return o


def interleave(main, fill, every=1, start=0):
    out = []
    k = 0
    for i, x in enumerate(main):
        out.append(x)
        if i >= start and (i - start) % every == 0 and k < len(fill):
            out += fill[k] if isinstance(fill[k], list) else [fill[k]]
            k += 1
    for x in fill[k:]:
        out += x if isinstance(x, list) else [x]
    return out


def prologue():
    o = []
    a = o.append
    a(salu("s_cmp_ge_u32 s2, 256"))
    a(Inst("s_cbranch_scc1 L_end", 'branch'))
    o += stamp(0) + rstamp(12)
    a(raw("s_load_dwordx4 s[36:39], s[0:1], 0", 'smem'))
    a(raw("s_load_dwordx4 s[40:43], s[0:1], 16", 'smem'))
    if opts['pf']:
        a(salu("s_getpc_b64 s[50:51]"))
        a(valu("v_lshlrev_b32", V(1), 4, V(0)))
        for j in range(opts['pf']):
            a(Inst(f"global_load_dwordx4 v[{100 + 4 * j}:{103 + 4 * j}], v1, s[50:51]", 'vmem', rd=[V(1)], wr=[V(100 + 4 * j, 4)], tag='pf'))
            a(valu("v_add_u32", V(1), 4096, V(1)))
    z = FR[0]
    for r in range(4):
        a(valu("v_mov_b32", z[r], 0))
    zero = [mfma(OA[i], z, z, 0) for i in range(8)] + [mfma(OB[i], z, z, 0) for i in range(8)]
    c = []
    a = c.append
    a(salu("s_and_b32 s32, s2, 7"))
    a(salu("s_lshr_b32 s33, s2, 3"))
    a(salu("s_lshl_b32 s32, s32, 3"))
    a(salu("s_lshr_b32 s34, s33, 2"))
    a(salu("s_add_u32 s32, s32, s34"))
    a(salu("s_and_b32 s33, s33, 3"))
    a(salu("s_lshl_b32 s34, s32, 18"))
    a(salu("s_mul_i32 s35, s32, 393216"))
    a(salu("s_mul_i32 s33, s33, 98304"))
    a(salu("s_add_u32 s35, s35, s33"))
    t0, t1, t2 = V(24), V(25), V(26)
    a(valu("v_lshrrev_b32", t0, 6, V(0)))
    a(valu("v_and_b32", V(0), 63, V(0)))
    a(Inst(f"v_readfirstlane_b32 {sW}, {t0}", 'valu', rd=[t0], wr=[sW], rfl=True))
    a(valu("v_lshlrev_b32", vLANE16, 4, V(0)))
    a(valu("v_lshrrev_b32", t2, 5, V(0)))
    a(salu(f"s_and_b32 {sP}, {sW}, 1", rd=[sW], wr=[sP]))
    a(salu(f"s_lshl_b32 s47, {sW}, 13", rd=[sW]))
    a(valu("v_add_u32", vDMA0, S(47), vLANE16))
    a(valu("v_add_u32", vDMA1, 4096, vDMA0))
    a(salu(f"s_mul_i32 {sKM0}, {sW}, {8 * PIECE}", rd=[sW], wr=[sKM0]))
    a(salu(f"s_add_u32 {sVM0}, {sKM0}, {VBUF0}", rd=[sKM0], wr=[sVM0]))
    a(salu(f"s_mov_b32 {sKOFF}, 0", wr=[sKOFF]))
    a(salu(f"s_mov_b32 {sVOFF}, 0", wr=[sVOFF]))
    a(salu(f"s_mov_b32 {sDELTA}, {TILE}", wr=[sDELTA]))
    a(salu(f"s_lshl_b32 s46, {sP}, 8", rd=[sP]))
    qsrc, qsrcB = V(28), V(29)
    a(valu("v_lshrrev_b32", t0, 4, V(0)))
    a(valu("v_lshlrev_b32", t0, 9, t0))
    a(valu("v_and_b32", t1, 15, V(0)))
    a(valu("v_lshl_add_u32", t0, t1, 4, t0))
    a(salu(f"s_lshl_b32 s47, {sW}, 14", rd=[sW]))
    a(valu("v_add_u32", qsrc, S(47), t0))
    a(salu(f"s_lshr_b32 s47, {sW}, 1", rd=[sW]))
    a(salu("s_lshl_b32 s47, s47, 14"))
    a(salu("s_add_u32 s47, s47, 65536"))
    a(salu("s_add_u32 s47, s47, s46"))
    a(valu("v_add_u32", qsrcB, S(47), t0))
    a(valu("v_and_b32", t0, 3, V(0)))
    a(valu("v_lshlrev_b32", t0, 2, t0))
    a(valu("v_bfe_u32", t1, V(0), 3, 2))
    a(valu("v_add_u32", t0, t0, t1))
    a(valu("v_mul_u32_u24", t0, PIECE, t0))
    a(valu("v_bfe_u32", t1, V(0), 2, 1))
    a(valu("v_lshl_add_u32", t0, t1, 9, t0))
    a(valu("v_lshl_add_u32", t0, t2, 4, t0))
    a(salu(f"s_mul_i32 s44, {sP}, {HALF}", rd=[sP]))
    a(salu(f"s_sub_u32 s45, {HALF}, s44"))
    a(valu("v_add_u32", vKX, S(44), t0))
    a(valu("v_add_u32", vKY, S(45), t0))
    a(valu("v_bfe_u32", t0, V(0), 2, 2))
    a(valu("v_mul_u32_u24", t0, 4 * PIECE, t0))
    a(valu("v_lshl_add_u32", t0, t2, 9, t0))
    a(valu("v_bfe_u32", t1, V(0), 4, 1))
    a(valu("v_lshl_add_u32", t0, t1, 5, t0))
    a(valu("v_and_b32", t1, 1, V(0)))
    a(valu("v_lshl_add_u32", t0, t1, 4, t0))
    a(valu("v_bfe_u32", t1, V(0), 1, 1))
    a(valu("v_lshl_add_u32", t0, t1, 3, t0))
    a(valu("v_add_u32", t0, VBUF0, t0))
    a(salu("s_add_u32 s47, s44, s46"))
    a(valu("v_add_u32", vVXl, S(47), t0))
    a(salu("s_sub_u32 s47, s44, s46"))
    a(valu("v_add_u32", vVXh, S(47), t0))
    a(salu("s_add_u32 s47, s45, s46"))
    a(valu("v_add_u32", vVYl, S(47), t0))
    a(salu("s_sub_u32 s47, s45, s46"))
    a(valu("v_add_u32", vVYh, S(47), t0))
    qa, qb0 = vX0, vX1
    a(valu("v_bfe_u32", t0, V(0), 2, 3))
    a(valu("v_mul_u32_u24", t0, PIECE, t0))
    a(valu("v_and_b32", t1, 3, V(0)))
    a(valu("v_lshl_add_u32", t0, t1, 8, t0))
    a(valu("v_lshl_add_u32", t0, t2, 4, t0))
    a(valu("v_add_u32", qa, sVM0, t0))
    a(salu(f"s_and_b32 s47, {sW}, 2", rd=[sW]))
    a(salu(f"s_mul_i32 s47, s47, {8 * PIECE}"))
    a(salu(f"s_add_u32 s47, s47, {TILE}"))
    a(valu("v_add_u32", qb0, S(47), t0))
    a(salu(f"s_mov_b32 {sC}, {f32(CSCALE)}", wr=[sC]))
    a(salu(f"s_mov_b32 {sFLAG}, 0", wr=[sFLAG]))
    a(salu(f"s_mov_b32 {sIT}, 0", wr=[sIT]))
    for who in 'AB':
        a(valu("v_mov_b32", vL[who], 0))
    o += interleave(c, zero, every=5, start=1)
    a = o.append
    a(raw("s_waitcnt lgkmcnt(0)", 'salu'))
    o += stamp(16)
    for srd, ptr, off, size in ((sK, 38, 's34', 262144), (sQ, 36, 's35', 98304), (sV, 40, 's34', 262144), (sO, 42, 's35', 98304)):
        a(salu(f"s_add_u32 s{srd.lo}, s{ptr}, {off}", wr=[srd[0]]))
        a(salu(f"s_addc_u32 s{srd.lo + 1}, s{ptr + 1}, 0", wr=[srd[1]]))
        a(salu(f"s_mov_b32 s{srd.lo + 2}, {size}", wr=[srd[2]]))
        a(salu(f"s_mov_b32 s{srd.lo + 3}, 0x20000", wr=[srd[3]]))

    def qdma(base, ldsoff, voff, goff, tag):
        m0 = salu(f"s_add_u32 m0, {base}, {ldsoff}", rd=[base], wr=['m0', 'scc'])
        so = salu(f"s_mov_b32 s48, {goff}", wr=[S(48)])
        ld = Inst(f"buffer_load_dwordx4 {voff}, {sQ}, s48 offen lds", 'vmem', rd=[voff, sQ, S(48), 'm0'], wr=[], dma=True, tag=tag, cost=8)
        return [m0, so, ld]
    for j in range(8):
        o += dma('K', j, 'K0')
    o += adv('K')
    for j in range(8):
        o += qdma(sKM0, j * PIECE, qsrcB, j * 2048, 'QB')
    for j in range(8):
        o += qdma(sVM0, j * PIECE, qsrc, j * 2048, 'QA0')
    o += stamp(17)
    qa1 = [qdma(sVM0, TILE + j * PIECE, qsrc, j * 2048 + 256, 'QA1') for j in range(8)]
    for j in range(4):
        o += qa1[j]
    a(wait(tags=['QB']))
    a(barrier())
    o += stamp(18)
    seq = []
    for s in range(4):
        seq += [ds_read("ds_read_b128", QB[s], qb0, 32 * (s % 8) + (s // 8) * 8 * PIECE)] + kread(FR[s % 8], vKX, s)
    for s in range(16):
        seq.append(mfma(sB, FR[s % 8], QB[s], sB if s else 0))
        n = s + 4
        if n < 16:
            seq += [ds_read("ds_read_b128", QB[n], qb0, 32 * (n % 8) + (n // 8) * 8 * PIECE)] + kread(FR[n % 8], vKX, n)
        if s % 3 == 0 and 4 + s // 3 < 8:
            seq += qa1[4 + s // 3]
    o += seq
    a(wait(lgkm0=True))
    a(barrier())
    o += stamp(19)
    smB = [x[0] for x in maxtree(vMX['B'], [sB[r] for r in range(16)], 0, 0) + first_max('B', 0, 0) + expblock(sB, 'B', 0, 0)
           + cvt(pB, sB, 0, 0, 0) + cvt(pB, sB, 1, 0, 0)]
    k1 = [dma('K', j, 'Knext') for j in range(8)]
    o += interleave(smB, k1, every=8, start=2)
    o += adv('K', -1)
    o += stamp(20)
    a(wait(tags=['QA0']))
    o += stamp(21)
    for s in range(8):
        a(ds_read("ds_read_b128", QA[s], qa, 32 * s))
    v0 = [dma('V', j, 'Vcur') for j in range(8)]

    def ahalf(h, extra):
        seq = []
        fl = [(vKX, sAX, s) for s in range(8 * h, 8 * h + 8)] + [(vKY, sAY, s) for s in range(8 * h, 8 * h + 8)]
        for n in range(4):
            seq += kread(FR[n % 8], fl[n][0], fl[n][2])
        for n in range(16):
            ad, acc, s = fl[n]
            m = mfma(acc, FR[n % 8], QA[s], acc if s else 0)
            if n == 0:
                m.extra_wait = [QA[8 * h + 7]]
            seq.append(m)
            if n + 4 < 16:
                seq += kread(FR[(n + 4) % 8], fl[n + 4][0], fl[n + 4][2])
            if n % 2 == 0 and n // 2 < len(extra):
                seq += extra[n // 2]
        return seq
    o += ahalf(0, v0)
    o += adv('V')
    o += stamp(22)
    a(wait(tags=['QA1']))
    o += stamp(23)
    for s in range(8):
        a(ds_read("ds_read_b128", QA[8 + s], qa, TILE + 32 * s))
    o += ahalf(1, [])
    a(wait(lgkm0=True))
    a(barrier())
    o += stamp(1)
    a(valu("v_add_u32", vKX, sDELTA, vKX))
    a(valu("v_add_u32", vKY, sDELTA, vKY))
    smA = [x[0] for x in maxtree(vMX['A'], [sAX[r] for r in range(16)], 0, 0) + maxtree(vMX['A'], [sAY[r] for r in range(16)], 0, 0, cont=True)
           + first_max('A', 0, 0) + expblock(sAX, 'A', 0, 0) + cvt(pAX, sAX, 0, 0, 0) + cvt(pAX, sAX, 1, 0, 0)]
    k2 = [dma('K', j, 'Knew') for j in range(8)]
    cut = len(smA) - 24
    o += interleave(smA[:cut], k2, every=6, start=0)
    o += adv('K')
    a(wait(tags=['Knext'], lgkm0=True))
    a(barrier())
    for f in range(NPRE):
        o += kread(FR[f], vKX, f)
    o += smA[cut:]
    a(salu(f"s_sub_u32 {sDELTA}, 0, {sDELTA}", rd=[sDELTA], wr=[sDELTA]))
    o += stamp(2) + rstamp(14)
    return o


XW = 16896
wa, ra, gl, gh, gb = V(24), V(25), V(26), V(27), V(28)
xw, xr, mw, mr = V(29), V(30), V(31), V(32)
inv2 = V(34, 2)
ml = V(36, 2)
tmpa = [V(40 + 4 * i, 4) for i in range(4)]
tmpb = [V(72 + 4 * i, 4) for i in range(4)]
SLAB1 = 81152
SLAB2 = SPARE - SLAB1


def slab(regs, gaddr, goff, buf, wtmp, rtmp):
    p1, p2 = [], []
    for g in range(4):
        p = wtmp[g]
        for j in range(4):
            p1.append(valu("v_cvt_pk_bf16_f32", p[j], regs[8 * g + 2 * j], regs[8 * g + 2 * j + 1]))
        p1.append(ds_write("ds_write_b128", wa, p, 32 * g + buf))
    for g in range(4):
        p1.append(ds_read("ds_read_b128", rtmp[g], ra, g * 8 * 144 + buf))
    for g in range(4):
        p = rtmp[g]
        st = Inst(f"buffer_store_dwordx4 {p}, {gaddr}, {sO}, s{52 + g} offen offset:{goff} {opts['stflag']}", 'vmem', rd=[p, gaddr, sO], wr=[], cost=8)
        st.store_data = p.regs()
        p2.append(st)
    return p1, p2


def scale32(regs, f2):
    if opts['pk']:
        return [Inst(f"v_pk_mul_f32 {R('v', regs[i].lo, 2)}, {R('v', regs[i].lo, 2)}, {f2}", 'valu', rd=[regs[i], regs[i + 1], f2], wr=[regs[i], regs[i + 1]], cost=8)
                for i in range(0, 32, 2)]
    return [valu("v_mul_f32", x, x, f2[0]) for x in regs]


def epi_streams(streams, idx, NM):
    END = NM
    LAT = opts['lat']
    t = [V(38), V(39), V(33)]
    st = []
    a = lambda x, af=0, bf=idx[('pvy', 0, 0)]: st.append((x, af, bf))
    a(salu(f"s_mul_i32 s44, {sW}, {XW}", rd=[sW]))
    a(salu(f"s_xor_b32 s45, {sW}, 1", rd=[sW]))
    a(salu(f"s_mul_i32 s45, s45, {XW}"))
    a(valu("v_add_u32", xw, S(44), vLANE16))
    a(valu("v_add_u32", xr, S(45), vLANE16))
    a(valu("v_lshrrev_b32", t[0], 1, vLANE16))
    a(valu("v_add_u32", mw, S(44), t[0]))
    a(valu("v_add_u32", mr, S(45), t[0]))
    a(valu("v_mov_b32", vT0, vL['B']))
    a(valu("v_mov_b32", ml[0], vNEG['B']))
    a(salu(f"s_mul_i32 s47, {sW}, 4608", rd=[sW]))
    a(perm(vT0, vL['B']))
    a(salu(f"s_add_u32 s47, s47, {SLAB1}"))
    a(valu("v_add_f32", ml[1], vL['B'], vT0))
    a(ds_write("ds_write_b64", mw, ml, 16384))
    a(valu("v_bfe_u32", t[0], vLANE16, 4, 5))
    a(valu("v_mul_u32_u24", t[0], 144, t[0]))
    a(valu("v_lshrrev_b32", t[1], 9, vLANE16))
    a(valu("v_lshl_add_u32", t[0], t[1], 4, t[0]))
    a(valu("v_add_u32", wa, S(47), t[0]))
    a(valu("v_lshrrev_b32", t[0], 7, vLANE16))
    a(valu("v_and_b32", t[1], 0x70, vLANE16))
    a(valu("v_mul_u32_u24", t[2], 144, t[0]))
    a(valu("v_add3_u32", ra, t[2], t[1], S(47)))
    a(valu("v_lshl_add_u32", t[0], t[0], 9, t[1]))
    a(salu(f"s_lshl_b32 s46, {sP}, 8", rd=[sP]))
    a(salu(f"s_lshl_b32 s47, {sW}, 14", rd=[sW]))
    a(salu("s_add_u32 s48, s47, s46"))
    a(valu("v_add_u32", gl, S(48), t[0]))
    a(salu("s_sub_u32 s48, s47, s46"))
    a(valu("v_add_u32", gh, S(48), t[0]))
    a(salu(f"s_lshr_b32 s47, {sW}, 1", rd=[sW]))
    a(salu("s_lshl_b32 s47, s47, 14"))
    a(salu("s_add_u32 s47, s47, 65536"))
    a(salu("s_add_u32 s47, s47, s46"))
    a(valu("v_add_u32", gb, S(47), t[0]))
    for g in range(4):
        a(salu(f"s_mov_b32 s{52 + g}, {g * 4096}"))
    for dt in range(4, 8):
        for k in range(4):
            w = ds_write("ds_write_b128", xw, OB[dt].sub(4 * k, 4), ((dt - 4) * 4 + k) * 1024)
            w.cost = 8
            a(w, min(idx[('pvxb', 1, dt)] + LAT, NM - 1), END)
    streams.append(st)
    s0 = streams[0]
    af = idx[('pvy', 0, 0)] - 1
    s0.append((valu("v_mov_b32", vT1, vL['A']), af, END))
    s0.append((nop(0), af, END))
    s0.append((perm(vT1, vL['A']), af, END))
    s0.append((valu("v_add_f32", vL['A'], vL['A'], vT1), af, END))
    s0.append((valu("v_rcp_f32", inv2[0], vL['A'], trans=True), af, END))
    s0.append((valu("v_rcp_f32", inv2[1], vL['A'], trans=True), af, END))
    pend = []
    for sl in range(4):
        regs = [OA[2 * sl + i // 16][i % 16] for i in range(32)]
        af = min(idx[('pvy', 1, 2 * sl + 1)] + LAT, NM - 1)
        p1, p2 = slab(regs, gl if sl < 2 else gh, 128 * sl, SLAB2 * (sl % 2), tmpa, tmpb if sl % 2 == 0 else FR[4:8] if sl == 3 else [V(56 + 4 * i, 4) for i in range(4)])
        items = scale32(regs, inv2)
        for x in items[:8] + pend + items[8:] + p1:
            s0.append((x, af, END))
        pend = p2
    epi_streams.pend = pend


def epilogue():
    o = []
    a = o.append
    a(wait(lgkm0=True))
    a(barrier())
    o += stamp(24)
    pml = V(36, 2)
    a(ds_read("ds_read_b64", pml, mr, 16384))
    for dt in range(4):
        for k in range(4):
            a(ds_read("ds_read_b128", OA[dt].sub(4 * k, 4), xr, (dt * 4 + k) * 1024))
    o += epi_streams.pend
    nm, lb = V(38), V(39)
    fo, fp = V(34, 2), V(32, 2)
    a(valu("v_add_f32", lb, vL['B'], vT0))
    a(valu("v_min_f32", nm, vNEG['B'], pml[0]))
    a(valu("v_sub_f32", fo[0], nm, vNEG['B']))
    a(valu("v_sub_f32", fp[0], nm, pml[0]))
    a(valu("v_exp_f32", fo[0], fo[0], trans=True))
    a(valu("v_exp_f32", fp[0], fp[0], trans=True))
    a(nop(0))
    a(valu("v_mul_f32", nm, lb, fo[0]))
    a(valu("v_fma_f32", nm, pml[1], fp[0], nm))
    a(valu("v_rcp_f32", nm, nm, trans=True))
    a(nop(0))
    a(valu("v_mul_f32", fo[0], fo[0], nm))
    a(valu("v_mul_f32", fp[0], fp[0], nm))
    a(valu("v_mov_b32", fo[1], fo[0]))
    a(valu("v_mov_b32", fp[1], fp[0]))
    pend = []
    t = [OA[4 + i // 16][i % 16] for i in range(32)]
    for sl in range(2):
        regs = [OA[2 * sl + i // 16][i % 16] for i in range(32)]
        own = [OB[2 * sl + i // 16][i % 16] for i in range(32)]
        for j in range(32):
            a(valu("v_accvgpr_read_b32", t[j], own[j]))
        o += scale32(t, fo)
        o += pend
        if opts['pk']:
            for j in range(0, 32, 2):
                d2, t2 = R('v', regs[j].lo, 2), R('v', t[j].lo, 2)
                a(Inst(f"v_pk_fma_f32 {d2}, {d2}, {fp}, {t2}", 'valu', rd=[d2, fp, t2], wr=[d2], cost=8))
        else:
            for j in range(32):
                a(valu("v_fma_f32", regs[j], regs[j], fp[0], t[j]))
        p1, p2 = slab(regs, gb, 128 * sl, SLAB2 * (sl % 2), tmpa, tmpb if sl % 2 == 0 else [V(56 + 4 * i, 4) for i in range(4)])
        o += p1
        pend = p2
    o += pend
    o += stamp(25)
    o += stamp_out()
    a(label("L_end"))
    a(Inst("s_endpgm", 'branch'))
    return o


def analyze2(dyn):
    seq = []
    gen = 0
    for ins in dyn:
        if ins.kind == 'retag':
            gen += 1
            continue
        seq.append((ins, gen))
    wrapped = []
    for ins, g in seq:
        if ins.kind == 'vmem' and ins.tag in ('Vnew', 'Knew', 'Vcur', 'Knext'):
            w = Inst(ins.text, 'vmem', cost=ins.cost)
            w.rd, w.wr, w.dma = ins.rd, ins.wr, ins.dma
            w.pre_nop, w.pre_vm, w.pre_lgkm = ins.pre_nop, ins.pre_vm, ins.pre_lgkm
            w.tag = {'Vnew': ('V', g + 1), 'Knew': ('K', g + 1), 'Vcur': ('V', 1), 'Knext': ('K', 0)}[ins.tag]
            w.orig = ins
            wrapped.append(w)
        elif ins.kind == 'wait' and ins.wait_tags and ins.wait_tags[0] in ('Vcur', 'Knext'):
            w = wait(tags=[('V', g) if ins.wait_tags[0] == 'Vcur' else ('K', g)], lgkm0=ins.wait_lgkm0)
            w.orig = ins
            w.res_vm = None
            wrapped.append(w)
        else:
            wrapped.append(ins)
    fw.analyze(wrapped)
    for w in wrapped:
        o = getattr(w, 'orig', None)
        if o is not None:
            if w.kind == 'wait':
                if w.res_vm is not None:
                    o.res_vm = w.res_vm if o.res_vm is None else min(o.res_vm, w.res_vm)
            else:
                o.pre_nop = max(o.pre_nop, w.pre_nop)
                if w.pre_vm is not None:
                    o.pre_vm = w.pre_vm
                if w.pre_lgkm is not None:
                    o.pre_lgkm = w.pre_lgkm


def main():
    pro = prologue()
    bl = Body('l')
    bf = Body('f', last=True)
    bf.insts += stamp(10) + rstamp(15)
    epi = epilogue()
    loop_head = [label("L_loop")]
    loop_tail = stamp_shift() + [salu(f"s_sub_u32 {sDELTA}, 0, {sDELTA}", rd=[sDELTA], wr=[sDELTA]),
                                 salu(f"s_add_u32 {sIT}, {sIT}, 1", rd=[sIT], wr=[sIT]),
                                 salu(f"s_cmp_lt_u32 {sIT}, {NSTEP - 1}"),
                                 Inst("s_cbranch_scc1 L_loop", 'branch')]
    dyn = list(pro)
    for it in range(NSTEP - 1):
        dyn.append(Inst("", 'retag'))
        dyn += loop_head + bl.insts + loop_tail
    dyn.append(Inst("", 'retag'))
    dyn += bf.insts + epi
    analyze2(dyn)
    analyze2(dyn)
    rare = bl.rare(True, True) + bf.rare(False, True)
    hdr = open('standalone__gqa_softmax__near_ridge.s.ref').read().split('\n')
    hdr = [l for l in hdr if l.startswith(';') and '@launch' not in l and 'Override' not in l and 'grid=ceil' not in l]
    txt = "\n".join(hdr) + f"\n; @launch grid=(256,1,1) block=(256,1,1) lds={LDS_BYTES}\n"
    txt += f""".amdgcn_target "amdgcn-amd-amdhsa--gfx950"
.text
.globl {KNAME}
.p2align 8
.type {KNAME},@function
{KNAME}:
"""
    txt += emit(pro) + "\n" + emit(loop_head + bl.insts + loop_tail) + "\n" + emit(bf.insts) + "\n" + emit(epi) + "\n"
    txt += emit(rare) + "\n"
    txt += f""".section .rodata,"a"
.p2align 6
.amdhsa_kernel {KNAME}
  .amdhsa_next_free_vgpr 512
  .amdhsa_next_free_sgpr 102
  .amdhsa_accum_offset 256
  .amdhsa_group_segment_fixed_size 0
  .amdhsa_kernarg_size 48
  .amdhsa_user_sgpr_count 2
  .amdhsa_user_sgpr_kernarg_segment_ptr 1
  .amdhsa_system_sgpr_workgroup_id_x 1
.end_amdhsa_kernel
"""
    open(sys.argv[1], 'w').write(txt)


main()
```

```python
class R:
    __slots__ = ('f', 'lo', 'n')

    def __init__(self, f, lo, n=1):
        self.f, self.lo, self.n = f, lo, n

    def __str__(self):
        return f"{self.f}{self.lo}" if self.n == 1 else f"{self.f}[{self.lo}:{self.lo + self.n - 1}]"

    def regs(self):
        return [f"{self.f}{i}" for i in range(self.lo, self.lo + self.n)]

    def sub(self, off, n=1):
        assert off + n <= self.n
        return R(self.f, self.lo + off, n)

    def __getitem__(self, i):
        return self.sub(i, 1)


def V(lo, n=1): return R('v', lo, n)
def A(lo, n=1): return R('a', lo, n)
def S(lo, n=1): return R('s', lo, n)


def _regs(xs):
    out = []
    for x in xs:
        if isinstance(x, R):
            out += x.regs()
        elif isinstance(x, str):
            out.append(x)
    return out


class Inst:
    def __init__(self, text, kind, rd=(), wr=(), cost=4, **kw):
        self.text = text
        self.kind = kind
        self.rd = _regs(rd)
        self.wr = _regs(wr)
        self.cost = cost
        self.srcc = []
        self.ab = []
        self.pre_lgkm = None
        self.pre_vm = None
        self.pre_nop = 0
        self.extra_wait = []
        self.tag = None
        self.wait_tags = None
        self.wait_lgkm0 = False
        self.store_data = []
        self.perm = False
        self.rfl = False
        self.dma = False
        self.name = None
        self.passes = 8
        self.comment = None
        for k, v in kw.items():
            setattr(self, k, v)


def mfma(D, Aop, Bop, C, name=None):
    ctext = str(C) if isinstance(C, R) else str(C)
    i = Inst(f"v_mfma_f32_32x32x16_bf16 {D}, {Aop}, {Bop}, {ctext}", 'mfma',
             rd=[Aop, Bop] + ([C] if isinstance(C, R) else []), wr=[D], cost=8)
    i.srcc = C.regs() if isinstance(C, R) else []
    i.ab = Aop.regs() + Bop.regs()
    i.name = name
    return i


def mfma16(D, Aop, Bop, C, name=None):
    i = mfma(D, Aop, Bop, C, name)
    i.text = i.text.replace("32x32x16", "16x16x32")
    i.passes = 4
    return i


def valu(op, dst, *srcs, trans=False, extra_rd=(), extra_wr=()):
    ops = ", ".join(str(x) for x in (dst,) + srcs)
    rd = [x for x in srcs if isinstance(x, R) or x in ('vcc',)] + list(extra_rd)
    wr = [dst] + list(extra_wr)
    return Inst(f"{op} {ops}", 'trans' if trans else 'valu', rd=rd, wr=wr, cost=8 if trans else 4)


def salu(text, rd=(), wr=()):
    return Inst(text, 'salu', rd=rd, wr=wr)


def raw(text, kind='salu', rd=(), wr=(), **kw):
    return Inst(text, kind, rd=rd, wr=wr, **kw)


def label(name):
    return Inst(f"{name}:", 'label', cost=0)


def ds_read(op, dst, addr, off):
    assert 0 <= off < 65536, off
    return Inst(f"{op} {dst}, {addr} offset:{off}", 'lds', rd=[addr], wr=[dst])


def ds_write(op, addr, src, off):
    assert 0 <= off < 65536, off
    i = Inst(f"{op} {addr}, {src} offset:{off}", 'lds', rd=[addr, src], wr=[])
    return i


def wait(tags=None, lgkm0=False, vm0=False):
    i = Inst("", 'wait')
    i.wait_tags = tags
    i.wait_lgkm0 = lgkm0
    i.vm0 = vm0
    i.res_vm = None
    return i


def barrier():
    return Inst("s_barrier", 'barrier')


def nop(n):
    i = Inst(f"s_nop {n}", 'nop')
    i.nstates = n + 1
    return i


VALU_KINDS = ('valu', 'trans')


def analyze(dyn, verbose=True):
    lq = []
    vq = []
    for ins in dyn:
        if ins.kind == 'label':
            continue
        need = set(ins.rd) | set(ins.wr) | set(_regs(ins.extra_wait))
        if ins.kind == 'wait':
            if ins.wait_lgkm0:
                lq = []
            if ins.vm0:
                vq = []
                ins.res_vm = 0
            elif ins.wait_tags:
                last = -1
                for k, (d, t) in enumerate(vq):
                    if t in ins.wait_tags:
                        last = k
                n = len(vq) - 1 - last
                if last >= 0:
                    n = min(n, 63)
                    ins.res_vm = n if ins.res_vm is None else min(ins.res_vm, n)
                    vq = vq[len(vq) - n:] if n else []
            continue
        last = -1
        for k, d in enumerate(lq):
            if d & need:
                last = k
        if last >= 0:
            n = min(len(lq) - 1 - last, 15)
            ins.pre_lgkm = n if ins.pre_lgkm is None else min(ins.pre_lgkm, n)
        if ins.pre_lgkm is not None:
            n = ins.pre_lgkm
            if len(lq) > n:
                lq = lq[len(lq) - n:] if n else []
        last = -1
        for k, (d, t) in enumerate(vq):
            if d & need:
                last = k
        if last >= 0:
            n = min(len(vq) - 1 - last, 63)
            ins.pre_vm = n if ins.pre_vm is None else min(ins.pre_vm, n)
        if ins.pre_vm is not None:
            n = ins.pre_vm
            if len(vq) > n:
                vq = vq[len(vq) - n:] if n else []
        if ins.kind == 'lds':
            lq.append(set(ins.wr))
        elif ins.kind == 'vmem':
            vq.append((set(ins.wr), ins.tag))
    hist = []
    warn = {}

    def states(i):
        n = i.pre_nop
        if i.pre_lgkm is not None or i.pre_vm is not None:
            n += 1
        if i.kind == 'label':
            return n
        if i.kind == 'wait':
            return n + (1 if (i.wait_lgkm0 or i.res_vm is not None) else 0)
        if i.kind == 'nop':
            return n + i.nstates
        return n + 1

    for idx, ins in enumerate(dyn):
        if ins.kind in ('label', 'wait', 'nop', 'barrier'):
            hist.append(ins)
            continue
        rd, wr = set(ins.rd), set(ins.wr)
        dist = ins.pre_nop + (1 if (ins.pre_lgkm is not None or ins.pre_vm is not None) else 0)
        needn = 0
        why = None
        for p in reversed(hist[-40:]):
            if dist >= 20:
                break
            req = 0
            pw = set(p.wr)
            if p.kind in VALU_KINDS:
                if ins.kind == 'mfma' and pw & rd:
                    req = max(req, 2)
                if ins.perm and pw & (rd | wr):
                    req = max(req, 2)
                if ins.rfl and pw & rd:
                    req = max(req, 1)
                if p.kind == 'trans' and ins.kind == 'valu' and pw & rd:
                    req = max(req, 1)
                if p.kind == 'trans' and ins.kind in ('lds', 'vmem') and pw & rd:
                    req = max(req, 1)
                sw = {x for x in pw if x[0] == 's' or x == 'vcc'}
                if sw & rd:
                    if ins.kind in VALU_KINDS:
                        req = max(req, 2)
                    if ins.kind == 'vmem':
                        req = max(req, 5)
                    if ins.kind == 'salu':
                        req = max(req, 1)
            if p.kind == 'mfma':
                h_rw, h_c, h_war = (12, 10, 7) if p.passes == 8 else (8, 6, 3)
                if ins.kind in VALU_KINDS or ins.kind in ('lds', 'vmem'):
                    if pw & (rd | wr):
                        req = max(req, h_rw)
                if ins.kind == 'mfma':
                    if pw & set(ins.ab):
                        req = max(req, h_rw)
                    if pw & set(ins.srcc) and list(p.wr) != list(ins.srcc):
                        req = max(req, h_c)
                    if pw & wr and not (pw & set(ins.srcc)):
                        req = max(req, h_c)
                if ins.kind in VALU_KINDS and set(p.srcc) & wr:
                    req = max(req, h_war)
            if p.kind == 'salu' and 'm0' in pw and ins.dma:
                req = max(req, 1)
            if p.store_data and set(p.store_data) & wr:
                req = max(req, 2)
            if req > dist and req - dist > needn:
                needn = req - dist
                why = p.text
            dist += states(p)
        if needn:
            ins.pre_nop += needn
            warn[id(ins)] = (ins.text, ins.pre_nop, why)
        hist.append(ins)
    if verbose:
        seen = set()
        for t in warn.values():
            if t not in seen and not (t[0].endswith('lds') and verbose < 2):
                print("NOP inserted:", t)
            seen.add(t)


def emit(block):
    out = []
    for i in block:
        if i.pre_lgkm is not None or i.pre_vm is not None:
            w = []
            if i.pre_vm is not None:
                w.append(f"vmcnt({i.pre_vm})")
            if i.pre_lgkm is not None:
                w.append(f"lgkmcnt({i.pre_lgkm})")
            out.append("    s_waitcnt " + " ".join(w))
        n = i.pre_nop
        while n > 0:
            k = min(n, 16)
            out.append(f"    s_nop {k - 1}")
            n -= k
        if i.kind == 'wait':
            w = []
            if i.res_vm is not None:
                w.append(f"vmcnt({i.res_vm})")
            if i.wait_lgkm0:
                w.append("lgkmcnt(0)")
            if w:
                out.append("    s_waitcnt " + " ".join(w))
        elif i.kind == 'label':
            out.append(i.text)
        else:
            out.append("    " + i.text + (f"   ; {i.comment}" if i.comment else ""))
    return "\n".join(out)
```

```python
import sys, math, struct
from fw import *
import fw

KNAME = "standalone__gqa_softmax__near_ridge_kernel"
PIECE = 1040
HALF = 16 * PIECE
TILE = 32 * PIECE
VBUF0 = 2 * TILE
SPARE = 4 * TILE
LDS_BYTES = 163840
CSCALE = math.log2(math.e) / 16.0
THR = 8.0

opts = dict(cap=8, stamp=0, nstep=8, pf=3, stflag='nt', qflag='nt', lat=4, gM=80, gS=20, ld=10, dv0=56, dv1=130, dk0=100, dk1=170, pk=1)
for a in sys.argv[2:]:
    k, v = a.split('=')
    opts[k] = int(v) if v.lstrip('-').isdigit() else v
NSTEP = opts['nstep']


def f32(x):
    return "0x%08x" % struct.unpack('<I', struct.pack('<f', x))[0]


vK, vV = V(1), V(2)
vOFF = [V(3 + i) for i in range(4)]
vNEG = [V(7 + u) for u in range(3)]
vAL = [V(10 + u) for u in range(3)]
vMX = V(13)
vT0, vT1, vT2 = V(14), V(15), V(16)
vLANE16 = V(17)
vX = [V(18 + i) for i in range(6)]
Sx = [[V(24 + 16 * u + 4 * kt, 4) for kt in range(4)] for u in range(3)]
Ex = [[V(72 + 16 * u + 4 * kt, 4) for kt in range(4)] for u in range(3)]
Px = [[V(120 + 8 * u + 4 * t, 4) for t in range(2)] for u in range(3)]
FR = [V(144 + 4 * i, 4) for i in range(12)] + [A(240 + 4 * i, 4) for i in range(4)]
NB = 16
Ox = [[V(192 + 4 * dt, 4) for dt in range(16)], [A(96 + 4 * dt, 4) for dt in range(16)], [A(160 + 4 * dt, 4) for dt in range(16)]]
Qx = [[A(32 * u + 4 * s, 4) for s in range(8)] for u in range(3)]
Lx = [A(224 + 4 * u, 4) for u in range(3)]
ONES = A(236, 4)
sQ, sK, sV, sO = S(4, 4), S(8, 4), S(12, 4), S(16, 4)
sC = S(20)
sIT = S(21)
sKOFF, sVOFF = S(22), S(23)
sKM0, sVM0 = S(24), S(25)
sDELTA = S(26)
sFLAG = S(27)
sW = S(28)


def dma8(kind, tag, sign=1):
    base, srd, off = (sKM0, sK, sKOFF) if kind == 'K' else (sVM0, sV, sVOFF)
    items = []
    for j in range(8):
        it = []
        ld = Inst(f"buffer_load_dwordx4 {vOFF[j % 4]}, {srd}, {off} offen offset:{(j % 4) * PIECE} lds", 'vmem',
                  rd=[vOFF[j % 4], srd, off, 'm0'], wr=[], dma=True, tag=tag, cost=4)
        if j == 0:
            items.append([salu(f"s_mov_b32 m0, {base}", rd=[base], wr=['m0'])])
        if j == 4:
            items.append([salu(f"s_add_u32 m0, {base}, {4 * PIECE}", rd=[base], wr=['m0', 'scc']),
                          salu(f"s_add_u32 {off}, {off}, 4096", rd=[off], wr=[off, 'scc'])])
        items.append([ld])
    fin = [salu(f"s_add_u32 {off}, {off}, {32768 - 4096}", rd=[off], wr=[off, 'scc']),
           salu(f"s_{'add' if sign > 0 else 'sub'}_u32 {base}, {base}, {sDELTA}", rd=[base, sDELTA], wr=[base, 'scc'])]
    if NSTEP > 8:
        fin.append(salu(f"s_and_b32 {off}, {off}, 0x3ffff", rd=[off], wr=[off, 'scc']))
    items.append(fin)
    return items


def kread(fr, kt, s):
    return [ds_read("ds_read_b128", fr, vK, PIECE * (kt % 2) + HALF * (kt // 2) + 64 * s)]


def vread(fr, dt, t):
    return [ds_read("ds_read_b64_tr_b16", fr.sub(2 * e, 2), vV, PIECE * e + HALF * t + 32 * dt) for e in range(2)]


def perm32(a, b):
    return Inst(f"v_permlane32_swap_b32 {a}, {b}", 'valu', rd=[a, b], wr=[a, b], perm=True)


def perm16(a, b):
    return Inst(f"v_permlane16_swap_b32 {a}, {b}", 'valu', rd=[a, b], wr=[a, b], perm=True)


def fma(u, kt, r):
    return valu("v_fma_f32", Ex[u][kt][r], Sx[u][kt][r], sC, vNEG[u])


def vexp(u, kt, r):
    return valu("v_exp_f32", Ex[u][kt][r], Ex[u][kt][r], trans=True)


def cvt(u, t, k):
    e = Ex[u][2 * t + k // 2]
    return valu("v_cvt_pk_bf16_f32", Px[u][t][k], e[2 * (k % 2)], e[2 * (k % 2) + 1])


def rowmax(dst, regs, tmp):
    out = []
    regs = list(regs)
    out.append(valu("v_max3_f32", dst, regs[0], regs[1], regs[2]))
    regs = regs[3:]
    while len(regs) >= 2:
        out.append(valu("v_max3_f32", dst, dst, regs[0], regs[1]))
        regs = regs[2:]
    if regs:
        out.append(valu("v_max_f32", dst, dst, regs[0]))
    out += [valu("v_mov_b32", tmp, dst), nop(1), perm32(tmp, dst), nop(0), valu("v_max_f32", dst, dst, tmp),
            valu("v_mov_b32", tmp, dst), nop(1), perm16(tmp, dst), nop(0), valu("v_max_f32", dst, dst, tmp)]
    return out


def cost(x):
    return sum(i.cost for i in x) if isinstance(x, list) else x.cost


def schedule(mf, fixed, reserve, streams, cap):
    NM = len(mf)
    for st in streams:
        dl = NM - 1
        acc = 0
        new = []
        for it in reversed(st):
            ins, a, b = it
            if b - 1 < dl:
                dl = b - 1
                acc = 0
            acc += cost(ins)
            while acc > 6 and dl > -1:
                dl -= 1
                acc -= 6
            new.append((ins, a, b, max(dl, a)))
        st[:] = list(reversed(new))
    sufb = []
    for st in streams:
        m = 10 ** 9
        sb = [0] * len(st)
        for k in range(len(st) - 1, -1, -1):
            m = min(m, st[k][2])
            sb[k] = m
        sufb.append(sb)
    out = []
    heads = [0] * len(streams)
    load = []
    for g in range(-1, NM):
        if g >= 0:
            out.append(mf[g])
        used = reserve.get(g, 0)
        for x in fixed.get(g, []):
            out.append(x); used += x.cost
        while True:
            cands = []
            for si, st in enumerate(streams):
                if heads[si] < len(st):
                    ins, a, b, dl = st[heads[si]]
                    if a <= g:
                        forced = (g == NM - 1) or sufb[si][heads[si]] - 1 <= g
                        if forced or (g >= 0 and used + cost(ins) <= cap):
                            cands.append((0 if forced else 1, dl, si))
            if not cands:
                break
            _, dl, si = min(cands)
            ins = streams[si][heads[si]][0]
            out += ins if isinstance(ins, list) else [ins]
            used += cost(ins)
            heads[si] += 1
        load.append(used)
    for si, st in enumerate(streams):
        assert heads[si] == len(st), (si, heads[si], len(st), st[heads[si]][0])
    return out, load


NPRE = 4


class Body:
    def __init__(self, name, last=False):
        self.name = name
        qk = not last
        U = (0, 1, 2)
        mf, frags, idx = [], [], {}

        def add(m, key):
            idx[key] = len(mf)
            mf.append(m)

        groups = []
        if qk:
            for kt in range(4):
                for hd in range(2):
                    fids = []
                    for s in range(4 * hd, 4 * hd + 4):
                        fids.append(len(frags))
                        frags.append(['K', (kt, s), len(mf), None])
                    groups.append((len(mf), fids))
                    for u in U:
                        for j, s in enumerate(range(4 * hd, 4 * hd + 4)):
                            add(mfma16(Sx[u][kt], FR[fids[j] % NB], Qx[u][s], Sx[u][kt] if s else 0), ('qk', u, kt, s))
                            frags[fids[j]][3] = len(mf) - 1
        nkf = len(frags)
        npv0 = len(mf)
        for u in U:
            for t in range(2):
                add(mfma16(Lx[u], ONES, Px[u][t], Lx[u]), ('l', u, t))
        for dp in range(8):
            fids = []
            for dt in (2 * dp, 2 * dp + 1):
                for t in range(2):
                    fids.append(len(frags))
                    frags.append(['V', (dt, t), len(mf), None])
            groups.append((len(mf), fids))
            for k, dt in enumerate((2 * dp, 2 * dp + 1)):
                for u in U:
                    for t in range(2):
                        f = fids[2 * k + t]
                        add(mfma16(Ox[u][dt], FR[f % NB], Px[u][t], Ox[u][dt]), ('pv', u, dt, t))
                        frags[f][3] = len(mf) - 1
        nf = len(frags)
        assert nf % NB == 0
        NM = len(mf)
        END = NM
        fixed, reserve = {}, {}
        for g0, fids in groups:
            mf[g0].extra_wait = [FR[f % NB] for f in fids]
            reserve[g0 - 1] = reserve.get(g0 - 1, 0) + 4
        gM = opts['gM'] if qk else -1
        gS = NM - opts['gS']
        LD = opts['ld']
        streams = []
        st = []
        for f, (kind, args, fu, lu) in enumerate(frags):
            if qk and f < NPRE:
                continue
            af = frags[f - NB][3] if f >= NB else -1
            bf = max(fu - LD + 4, af + 1)
            if kind == 'K':
                bf = min(bf, gM - 2)
                assert af < bf
                rd = kread(FR[f % NB], *args)
            else:
                af = max(af, gM)
                bf = max(bf, af + 1)
                if qk:
                    bf = min(bf, gS - 2)
                    assert af < bf, (f, af, bf)
                rd = vread(FR[f % NB], *args)
            af = max(af, min(fu - 2 * LD - 8, bf - 1))
            for r in rd:
                st.append((r, af, bf))
        if qk:
            for f in range(NPRE):
                af = max(gS, frags[nf - NB + f][3])
                st.append((kread(FR[f], 0, f)[0], af, max(NM - 6, af + 1)))
        streams.append(st)
        if qk:
            fixed[gM] = [wait(tags=['Vcur'], lgkm0=True), barrier(), valu("v_add_u32", vK, sDELTA, vK)]
            fixed[gS] = [wait(tags=['Knext'], lgkm0=True), barrier(), valu("v_subrev_u32", vV, sDELTA, vV)]
            dv = dma8('V', 'Vnew')
            dk = dma8('K', 'Knew')
            st = []
            for n, it in enumerate(dv):
                a0 = opts['dv0'] + (opts['dv1'] - opts['dv0']) * n // len(dv)
                st.append((it, a0, opts['dv1'] + 4))
            for n, it in enumerate(dk):
                a0 = max(gM, opts['dk0'] + (opts['dk1'] - opts['dk0']) * n // len(dk))
                st.append((it, a0, opts['dk1'] + 4))
            streams.append(st)
        else:
            fixed[gM] = [wait(vm0=True, lgkm0=True), barrier()]
        LAT = opts['lat']
        st = []
        fl = [salu(f"s_cmp_lg_u32 {sFLAG}, 0", rd=[sFLAG], wr=['scc']),
              Inst(f"s_cbranch_scc1 L_resc_{name}", 'branch'), label(f"L_rescback_{name}")]
        st.append((fl, 1 if qk else -1, 12 if qk else 0))
        for t in range(2):
            for u in U:
                bf = idx[('qk', u, 2 * t, 7)] + LAT if qk else idx[('l', u, t)] - 0
                for k in range(4):
                    st.append((cvt(u, t, k), -1, bf))
        streams.append(st)
        if qk:
            sa, sb = [], []
            for t in range(2):
                first = True
                for kt in (2 * t, 2 * t + 1):
                    for u in U:
                        af = idx[('qk', u, kt, 7)] + LAT
                        e = Ex[u][kt]
                        for r in range(4):
                            sa.append((fma(u, kt, r), af, END))
                        if first:
                            sa.append((valu("v_max3_f32", vMX, e[0], e[1], e[2]), af, END))
                            sa.append((valu("v_max_f32", vMX, vMX, e[3]), af, END))
                            first = False
                        else:
                            sa.append((valu("v_max3_f32", vMX, vMX, e[0], e[1]), af, END))
                            sa.append((valu("v_max3_f32", vMX, vMX, e[2], e[3]), af, END))
                c = Inst(f"v_cmp_lt_f32 vcc, {f32(THR)}, {vMX}", 'valu', rd=[vMX], wr=['vcc'])
                b = [Inst(f"s_cbranch_vccnz L_rare{t}_{name}", 'branch'), label(f"L_back{t}_{name}")]
                sa.append((c, 0, END))
                sa.append((b, 0, END))
                ex = [(vexp(u, kt, r), 0, END) for kt in (2 * t, 2 * t + 1) for u in U for r in range(4)]
                if t == 0:
                    self.pending_ex = ex
                    mark = len(sa)
                else:
                    h1 = sa[mark:-2]
                    merged = []
                    e0 = self.pending_ex
                    nk2 = len(h1) // 2
                    merged += e0[:9]
                    k = 9
                    for j, it in enumerate(h1[:nk2]):
                        merged.append(it)
                        if j % 3 == 2 and k < len(e0):
                            merged.append(e0[k]); k += 1
                    merged += e0[k:]
                    merged += h1[nk2:]
                    sa = sa[:mark] + merged + sa[-2:] + ex
            streams.append(sa)
        else:
            epi_streams(streams, idx, NM)
        self.insts, self.load = schedule(mf, fixed, reserve, streams, opts['cap'])

    def rare(self, head):
        n = self.name
        out = []
        if head:
            for t in range(2):
                out.append(label(f"L_rare{t}_{n}"))
                for u in range(3):
                    regs = [Sx[u][kt][r] for kt in (2 * t, 2 * t + 1) for r in range(4)]
                    out += rowmax(vT0, regs, vT1)
                    out += [valu("v_mul_f32", vT0, f32(-CSCALE), vT0),
                            valu("v_min_f32", vT0, vT0, vNEG[u]),
                            valu("v_sub_f32", vT1, vT0, vNEG[u]),
                            valu("v_exp_f32", vT1, vT1, trans=True),
                            valu("v_mov_b32", vNEG[u], vT0),
                            valu("v_mul_f32", vAL[u], vAL[u], vT1)]
                    for kt in (2 * t, 2 * t + 1):
                        for r in range(4):
                            out.append(fma(u, kt, r))
                    if t == 1:
                        for kt in (0, 1):
                            for r in range(4):
                                out.append(valu("v_mul_f32", Ex[u][kt][r], Ex[u][kt][r], vT1))
                out += [salu(f"s_mov_b32 {sFLAG}, 1"), Inst(f"s_branch L_back{t}_{n}", 'branch')]
        out += [label(f"L_resc_{n}"), nop(15)]
        for u in range(3):
            regs = [Ox[u][dt][r] for dt in range(16) for r in range(4)] + [Lx[u][r] for r in range(4)]
            for x in regs:
                if x.f == 'v':
                    out.append(valu("v_mul_f32", x, x, vAL[u]))
                else:
                    out += [valu("v_accvgpr_read_b32", vT0, x), valu("v_mul_f32", vT0, vT0, vAL[u]), valu("v_accvgpr_write_b32", x, vT0)]
            out.append(valu("v_mov_b32", vAL[u], 1.0))
        out += [salu(f"s_mov_b32 {sFLAG}, 0"), nop(3), Inst(f"s_branch L_rescback_{n}", 'branch')]
        return out


def stamp(k):
    if not opts['stamp']:
        return []
    return [raw("s_memtime s[60:61]", 'smem'), raw("s_waitcnt lgkmcnt(0)", 'salu'), salu(f"s_mov_b32 s{64 + k}, s60")]


def rstamp(k):
    if not opts['stamp']:
        return []
    return [raw("s_memrealtime s[60:61]", 'smem'), raw("s_waitcnt lgkmcnt(0)", 'salu'), salu(f"s_mov_b32 s{64 + k}, s60")]


def stamp_shift():
    if not opts['stamp']:
        return []
    o = [raw("s_memtime s[60:61]", 'smem')]
    for k in range(9, 3, -1):
        o.append(salu(f"s_mov_b32 s{64 + k}, s{63 + k}"))
    o += [raw("s_waitcnt lgkmcnt(0)", 'salu'), salu("s_mov_b32 s67, s60")]
    return o


def stamp_out():
    if not opts['stamp']:
        return []
    o = [raw("s_waitcnt vmcnt(0)", 'salu')] + stamp(11) + rstamp(13)
    o += [raw("s_load_dwordx2 s[60:61], s[0:1], 40", 'smem'), raw("s_waitcnt lgkmcnt(0)", 'salu'),
          salu("s_mov_b32 s62, 0x100000"), salu("s_mov_b32 s63, 0x20000")]
    for k in range(32):
        o.append(raw(f"v_writelane_b32 v0, s{64 + k}, {k}", 'valu'))
    o += [salu(f"s_lshl_b32 s44, s2, 2"), salu(f"s_add_u32 s44, s44, {sW}"), salu("s_lshl_b32 s44, s44, 8"),
          valu("v_lshrrev_b32", V(1), 2, vLANE16), nop(4),
          raw("buffer_store_dword v0, v1, s[60:63], s44 offen", 'vmem')]
    return o


def flat(x):
    o = []
    for it in x:
        o += it if isinstance(it, list) else [it]
    return o


def interleave(main, fill, every=1, start=0):
    out = []
    k = 0
    for i, x in enumerate(main):
        out.append(x)
        if i >= start and (i - start) % every == 0 and k < len(fill):
            out += fill[k] if isinstance(fill[k], list) else [fill[k]]
            k += 1
    for x in fill[k:]:
        out += x if isinstance(x, list) else [x]
    return out


def prologue():
    o = []
    a = o.append
    a(salu("s_cmp_ge_u32 s2, 256"))
    a(Inst("s_cbranch_scc1 L_end", 'branch'))
    o += stamp(0) + rstamp(12)
    a(raw("s_load_dwordx4 s[36:39], s[0:1], 0", 'smem'))
    a(raw("s_load_dwordx4 s[40:43], s[0:1], 16", 'smem'))
    if opts['pf']:
        a(salu("s_getpc_b64 s[50:51]"))
        a(valu("v_lshlrev_b32", V(1), 4, V(0)))
        for j in range(opts['pf']):
            a(Inst(f"global_load_dwordx4 {Ex[0][j % 4]}, v1, s[50:51]", 'vmem', rd=[V(1)], wr=[Ex[0][j % 4]], tag='pf'))
            a(valu("v_add_u32", V(1), 4096, V(1)))
    z = FR[0]
    for r in range(4):
        a(valu("v_mov_b32", z[r], 0))
    zero = [mfma(V(192 + 16 * i, 16), z, z, 0) for i in range(4)] + [mfma(A(96 + 16 * i, 16), z, z, 0) for i in range(9)]
    c = []
    a = c.append
    a(salu("s_and_b32 s32, s2, 7"))
    a(salu("s_lshr_b32 s33, s2, 3"))
    a(salu("s_lshl_b32 s32, s32, 3"))
    a(salu("s_lshr_b32 s34, s33, 2"))
    a(salu("s_add_u32 s32, s32, s34"))
    a(salu("s_and_b32 s33, s33, 3"))
    a(salu("s_lshl_b32 s34, s32, 18"))
    a(salu("s_mul_i32 s35, s32, 393216"))
    a(salu("s_mul_i32 s33, s33, 98304"))
    a(salu("s_add_u32 s35, s35, s33"))
    t0, t1, t2 = vT0, vT1, vT2
    a(valu("v_lshrrev_b32", t0, 6, V(0)))
    a(valu("v_and_b32", V(0), 63, V(0)))
    a(Inst(f"v_readfirstlane_b32 {sW}, {t0}", 'valu', rd=[t0], wr=[sW], rfl=True))
    a(valu("v_lshlrev_b32", vLANE16, 4, V(0)))
    a(salu(f"s_mov_b32 {sKOFF}, 0", wr=[sKOFF]))
    a(salu(f"s_mov_b32 {sVOFF}, 0", wr=[sVOFF]))
    a(salu(f"s_lshl_b32 s47, {sW}, 13", rd=[sW]))
    a(valu("v_add_u32", vOFF[3], S(47), vLANE16))
    for j in range(3):
        a(valu("v_add_u32", vOFF[j], 16 * (3 - j), vOFF[3]))
    a(salu(f"s_mul_i32 {sKM0}, {sW}, {8 * PIECE}", rd=[sW], wr=[sKM0]))
    a(salu(f"s_add_u32 {sVM0}, {sKM0}, {VBUF0}", rd=[sKM0], wr=[sVM0]))
    a(salu(f"s_mov_b32 {sDELTA}, {TILE}", wr=[sDELTA]))
    a(salu(f"s_lshl_b32 s49, {sW}, 14", rd=[sW]))
    def rowpart(dst, m):
        a(valu("v_and_b32", dst, 7, m))
        a(valu("v_mul_u32_u24", dst, 2 * PIECE, dst))
        a(valu("v_lshrrev_b32", t2, 1, m))
        a(valu("v_xor_b32", t2, t2, m))
        a(valu("v_bfe_u32", t2, t2, 2, 1))
        a(valu("v_lshl_add_u32", dst, t2, 9, dst))
    a(valu("v_and_b32", t1, 15, V(0)))
    rowpart(t0, t1)
    a(valu("v_lshrrev_b32", t1, 4, V(0)))
    a(valu("v_lshl_add_u32", vK, t1, 4, t0))
    a(valu("v_lshrrev_b32", t1, 2, V(0)))
    rowpart(t0, t1)
    a(valu("v_and_b32", t1, 3, V(0)))
    a(valu("v_lshl_add_u32", t0, t1, 3, t0))
    a(valu("v_add_u32", vV, VBUF0, t0))
    qa = vX[0]
    a(valu("v_bfe_u32", t0, V(0), 1, 3))
    a(valu("v_mul_u32_u24", t0, PIECE, t0))
    a(valu("v_and_b32", t1, 1, V(0)))
    a(valu("v_lshl_add_u32", t0, t1, 9, t0))
    a(valu("v_lshrrev_b32", t1, 4, V(0)))
    a(valu("v_lshl_add_u32", t0, t1, 4, t0))
    a(valu("v_add_u32", qa, sKM0, t0))
    a(valu("v_add_u32", vX[1], 2 * TILE, qa))
    a(salu(f"s_mov_b32 {sC}, {f32(CSCALE)}", wr=[sC]))
    a(salu(f"s_mov_b32 {sFLAG}, 0", wr=[sFLAG]))
    a(salu(f"s_mov_b32 {sIT}, 0", wr=[sIT]))
    a(salu("s_mov_b32 s47, 0x3f803f80"))
    for u in range(3):
        a(valu("v_mov_b32", vAL[u], 1.0))
    o += interleave(c, zero, every=5, start=1)
    a = o.append
    a(nop(7))
    for r in range(4):
        a(valu("v_accvgpr_write_b32", ONES[r], S(47)))
    a(raw("s_waitcnt lgkmcnt(0)", 'salu'))
    o += stamp(16)
    for srd, ptr, off, size, bias in ((sK, 38, 's34', 262144, 48), (sQ, 36, 's35', 98304, 48), (sV, 40, 's34', 262144, 48), (sO, 42, 's35', 98304, 0)):
        a(salu(f"s_add_u32 s{srd.lo}, s{ptr}, {off}", wr=[srd[0]]))
        a(salu(f"s_addc_u32 s{srd.lo + 1}, s{ptr + 1}, 0", wr=[srd[1]]))
        if bias:
            a(salu(f"s_sub_u32 s{srd.lo}, s{srd.lo}, {bias}", wr=[srd[0]]))
            a(salu(f"s_subb_u32 s{srd.lo + 1}, s{srd.lo + 1}, 0", wr=[srd[1]]))
        a(salu(f"s_mov_b32 s{srd.lo + 2}, {size + bias}", wr=[srd[2]]))
        a(salu(f"s_mov_b32 s{srd.lo + 3}, 0x20000", wr=[srd[3]]))

    def qdma(u):
        items = []
        for j in range(8):
            it = []
            if j % 4 == 0:
                it += [salu(f"s_mul_i32 m0, {sW}, {8 * PIECE}", rd=[sW], wr=['m0']),
                       salu(f"s_add_u32 m0, m0, {(u + 1) * TILE + j * PIECE}", wr=['m0', 'scc']),
                       salu(f"s_add_u32 s48, s49, {u * 8192 + j * 1024}", wr=[S(48)])]
            it.append(Inst(f"buffer_load_dwordx4 {vOFF[j % 4]}, {sQ}, s48 offen offset:{(j % 4) * PIECE} {opts['qflag']} lds", 'vmem',
                           rd=[vOFF[j % 4], sQ, S(48), 'm0'], wr=[], dma=True, tag=f"Q{u}", cost=4))
            items.append(it)
        return items
    o += flat(dma8('K', 'K0'))
    o += flat(qdma(0))
    o += flat(qdma(1))
    o += stamp(17)
    q2 = qdma(2)
    a(wait(tags=['Q0']))
    a(barrier())
    o += stamp(18)

    def unit(u, extra):
        seq = []
        for s in range(8):
            seq.append(ds_read("ds_read_b128", Qx[u][s], qa if u == 0 else vX[1], (TILE if u != 1 else 0) + 64 * s))
        fl = [(kt, s) for kt in range(4) for s in range(8)]
        for n in range(6):
            seq += kread(FR[n % NB], *fl[n])
        k = 0
        for n in range(32):
            kt, s = fl[n]
            m = mfma16(Sx[u][kt], FR[n % NB], Qx[u][s], Sx[u][kt] if s else 0)
            if n == 0:
                m.extra_wait = [Qx[u][7]]
            seq.append(m)
            if n + 6 < 32:
                seq += kread(FR[(n + 6) % NB], *fl[n + 6])
            if n % 3 == 0 and k < len(extra):
                seq += extra[k]; k += 1
        rest = extra[k:]
        sm = rowmax(vT0, [Sx[u][kt][r] for kt in range(4) for r in range(4)], vT1)
        sm.append(valu("v_mul_f32", vNEG[u], f32(-CSCALE), vT0))
        for kt in range(4):
            for r in range(4):
                sm.append(fma(u, kt, r))
        for kt in range(4):
            for r in range(4):
                sm.append(vexp(u, kt, r))
        return seq, interleave(sm, rest, every=4, start=2)
    k1 = dma8('K', 'Knext', -1)
    s0, m0_ = unit(0, q2 + k1)
    o += s0 + m0_
    o += stamp(19)
    a(wait(tags=['Q1']))
    o += stamp(20)
    s1, m1_ = unit(1, dma8('V', 'Vcur'))
    o += s1 + m1_
    o += stamp(21)
    a(wait(tags=['Q2']))
    o += stamp(22)
    s2, m2_ = unit(2, [])
    o += s2
    a(wait(lgkm0=True))
    a(barrier())
    o += stamp(1)
    a(valu("v_add_u32", vK, sDELTA, vK))
    cut = len(m2_) - 10
    o += interleave(m2_[:cut], dma8('K', 'Knew'), every=4, start=0)
    a(wait(tags=['Knext'], lgkm0=True))
    a(barrier())
    for f in range(NPRE):
        o += kread(FR[f], 0, f)
    o += m2_[cut:]
    a(salu(f"s_sub_u32 {sDELTA}, 0, {sDELTA}", rd=[sDELTA], wr=[sDELTA]))
    o += stamp(2) + rstamp(14)
    return o


SROW = 272
SLABB = 16 * SROW
wa, ra, ga = vX[0], vX[1], vX[2]
inv = [V(24 + 2 * u, 2) for u in range(3)]
tmpf = [V(32 + i) for i in range(32)]
pk_t = [V(72 + 2 * i, 2) for i in range(8)]
rd_t = [[V(88 + 16 * b + 4 * i, 4) for i in range(4)] for b in range(2)]


def slab(u, hf, n):
    p1, p2 = [], []
    buf = (n % 4) * SLABB
    regs = [Ox[u][8 * hf + i // 4][i % 4] for i in range(32)]
    if regs[0].f == 'a':
        src = tmpf
        for i in range(32):
            p1.append(valu("v_accvgpr_read_b32", tmpf[i], regs[i]))
    else:
        src = regs
    for i in range(0, 32, 2):
        d2 = R('v', src[i].lo, 2)
        if opts['pk']:
            p1.append(Inst(f"v_pk_mul_f32 {d2}, {d2}, {inv[u]}", 'valu', rd=[d2, inv[u]], wr=[d2], cost=8))
        else:
            p1 += [valu("v_mul_f32", src[i], src[i], inv[u][0]), valu("v_mul_f32", src[i + 1], src[i + 1], inv[u][0])]
    for dt in range(8):
        p = pk_t[dt]
        p1.append(valu("v_cvt_pk_bf16_f32", p[0], src[4 * dt], src[4 * dt + 1]))
        p1.append(valu("v_cvt_pk_bf16_f32", p[1], src[4 * dt + 2], src[4 * dt + 3]))
        p1.append(ds_write("ds_write_b64", wa, p, 32 * dt + buf))
    rt = rd_t[n % 2]
    for g in range(4):
        p1.append(ds_read("ds_read_b128", rt[g], ra, g * 4 * SROW + buf))
    for g in range(4):
        off = u * 8192 + g * 2048 + hf * 256
        st = Inst(f"buffer_store_dwordx4 {rt[g]}, {ga}, {sO}, s{52 + off // 4096} offen offset:{off % 4096} {opts['stflag']}", 'vmem',
                  rd=[rt[g], ga, sO], wr=[], cost=4)
        st.store_data = rt[g].regs()
        p2.append(st)
    return p1, p2


def epi_streams(streams, idx, NM):
    END = NM
    LAT = opts['lat']
    st = []
    a = lambda x, af=6, bf=END: st.append((x, af, bf))
    t0, t1 = vT0, vT1
    a(salu(f"s_mul_i32 s47, {sW}, {4 * SLABB}", rd=[sW]))
    a(valu("v_bfe_u32", t0, vLANE16, 4, 4))
    a(valu("v_mul_u32_u24", t0, SROW, t0))
    a(valu("v_lshrrev_b32", t1, 8, vLANE16))
    a(valu("v_lshl_add_u32", t0, t1, 3, t0))
    a(valu("v_add_u32", wa, S(47), t0))
    a(valu("v_mul_u32_u24", t0, SROW, t1))
    a(valu("v_and_b32", vT2, 0xf0, vLANE16))
    a(valu("v_add3_u32", ra, t0, vT2, S(47)))
    a(salu(f"s_mul_i32 s47, {sW}, 24576", rd=[sW]))
    a(valu("v_lshl_add_u32", t0, t1, 9, vT2))
    a(valu("v_add_u32", ga, S(47), t0))
    for g in range(6):
        a(salu(f"s_mov_b32 s{52 + g}, {g * 4096}"))
    for u in range(3):
        af = idx[('l', u, 1)] + LAT
        a(valu("v_accvgpr_read_b32", inv[u][0], Lx[u][0]), af)
        a(valu("v_rcp_f32", inv[u][0], inv[u][0], trans=True), af)
        a(nop(0), af)
        a(valu("v_mov_b32", inv[u][1], inv[u][0]), af)
    pend = []
    n = 0
    for hf in range(2):
        for u in range(3):
            af = min(idx[('pv', u, 8 * hf + 7, 1)] + LAT, NM - 1)
            p1, p2 = slab(u, hf, n)
            n += 1
            for x in p1[:10] + pend + p1[10:]:
                a(x, af)
            pend = p2
    for x in pend:
        a(x, NM - 1)
    streams.append(st)


def epilogue():
    o = []
    o += stamp(25)
    o += stamp_out()
    o.append(label("L_end"))
    o.append(Inst("s_endpgm", 'branch'))
    return o


def analyze2(dyn):
    seq = []
    gen = 0
    for ins in dyn:
        if ins.kind == 'retag':
            gen += 1
            continue
        seq.append((ins, gen))
    wrapped = []
    for ins, g in seq:
        if ins.kind == 'vmem' and ins.tag in ('Vnew', 'Knew', 'Vcur', 'Knext'):
            w = Inst(ins.text, 'vmem', cost=ins.cost)
            w.rd, w.wr, w.dma = ins.rd, ins.wr, ins.dma
            w.pre_nop, w.pre_vm, w.pre_lgkm = ins.pre_nop, ins.pre_vm, ins.pre_lgkm
            w.tag = {'Vnew': ('V', g + 1), 'Knew': ('K', g + 1), 'Vcur': ('V', 1), 'Knext': ('K', 0)}[ins.tag]
            w.orig = ins
            wrapped.append(w)
        elif ins.kind == 'wait' and ins.wait_tags and ins.wait_tags[0] in ('Vcur', 'Knext'):
            w = wait(tags=[('V', g) if ins.wait_tags[0] == 'Vcur' else ('K', g)], lgkm0=ins.wait_lgkm0)
            w.orig = ins
            w.res_vm = None
            wrapped.append(w)
        else:
            wrapped.append(ins)
    fw.analyze(wrapped, verbose=2)
    for w in wrapped:
        o = getattr(w, 'orig', None)
        if o is not None:
            if w.kind == 'wait':
                if w.res_vm is not None:
                    o.res_vm = w.res_vm if o.res_vm is None else min(o.res_vm, w.res_vm)
            else:
                o.pre_nop = max(o.pre_nop, w.pre_nop)
                if w.pre_vm is not None:
                    o.pre_vm = w.pre_vm
                if w.pre_lgkm is not None:
                    o.pre_lgkm = w.pre_lgkm


def main():
    pro = prologue()
    bl = Body('l')
    bf = Body('f', last=True)
    print("loop load:", "".join(str(min(x // 4, 9)) for x in bl.load))
    bf.insts += stamp(10) + rstamp(15)
    epi = epilogue()
    loop_head = [label("L_loop")]
    loop_tail = stamp_shift() + [salu(f"s_sub_u32 {sDELTA}, 0, {sDELTA}", rd=[sDELTA], wr=[sDELTA]),
                                 salu(f"s_add_u32 {sIT}, {sIT}, 1", rd=[sIT], wr=[sIT]),
                                 salu(f"s_cmp_lt_u32 {sIT}, {NSTEP - 1}"),
                                 Inst("s_cbranch_scc1 L_loop", 'branch')]
    dyn = list(pro)
    for it in range(NSTEP - 1):
        dyn.append(Inst("", 'retag'))
        dyn += loop_head + bl.insts + loop_tail
    dyn.append(Inst("", 'retag'))
    dyn += bf.insts + epi
    analyze2(dyn)
    analyze2(dyn)
    nw = sum(1 for i in bl.insts if i.pre_lgkm is not None or i.pre_vm is not None)
    print("loop insts", len(bl.insts), "auto waits", nw, "nops", sum(1 for i in bl.insts if i.pre_nop))
    rare = bl.rare(True) + bf.rare(False)
    fw.analyze(rare, verbose=0)
    hdr = open('standalone__gqa_softmax__near_ridge.s.ref').read().split('\n')
    hdr = [l for l in hdr if l.startswith(';') and '@launch' not in l and 'Override' not in l and 'grid=ceil' not in l]
    txt = "\n".join(hdr) + f"\n; @launch grid=(256,1,1) block=(256,1,1) lds={LDS_BYTES}\n"
    txt += f""".amdgcn_target "amdgcn-amd-amdhsa--gfx950"
.text
.globl {KNAME}
.p2align 8
.type {KNAME},@function
{KNAME}:
"""
    txt += emit(pro) + "\n" + emit(loop_head + bl.insts + loop_tail) + "\n" + emit(bf.insts) + "\n" + emit(epi) + "\n"
    txt += emit(rare) + "\n"
    txt += f""".section .rodata,"a"
.p2align 6
.amdhsa_kernel {KNAME}
  .amdhsa_next_free_vgpr 512
  .amdhsa_next_free_sgpr 102
  .amdhsa_accum_offset 256
  .amdhsa_group_segment_fixed_size 0
  .amdhsa_kernarg_size 48
  .amdhsa_user_sgpr_count 2
  .amdhsa_user_sgpr_kernarg_segment_ptr 1
  .amdhsa_system_sgpr_workgroup_id_x 1
.end_amdhsa_kernel
"""
    open(sys.argv[1], 'w').write(txt)


main()
```

```python
import sys, math, struct
from fw import *
import fw

KNAME = "standalone__gqa_softmax__near_ridge_kernel"
PIECE = 1040
HALF = 16 * PIECE
TILE = 32 * PIECE
VBUF0 = 2 * TILE
SPARE = 4 * TILE
LDS_BYTES = 163840
CSCALE = math.log2(math.e) / 16.0
THR = 8.0

opts = dict(l2pf=0, rowmap=0, ystart=0, ycap=12, ycap2=16, memfirst=1, memwin=6, zend=1, zcap1=8, zcap2=16, zcap3=16, otouch=0, dcost=8, bm=8, fold=1, chain=4, ramp=0, rcap=8, rv0=40, acap=0, skew=0, q2at=56, nq=4, fcap=0, pcap=12, k1at=8, v0at=40, k2at=0, qdirect=0, cap=8, stamp=0, nstep=8, pf=5, stflag='nt', qflag='nt', lat=4, gM=80, gS=20, ld=10, dv0=10, dv1=70, dk0=84, dk1=150, pk=0)
for a in sys.argv[2:]:
    k, v = a.split('=')
    opts[k] = int(v) if v.lstrip('-').isdigit() else v.replace('+', ' ')
NSTEP = opts['nstep']
RM = opts['rowmap']
SUBS, WAVS, UNIS, QSZ = {0: (98304, 24576, 8192, 98304), 1: (32768, 8192, 131072, 2 * 131072 + 32768), 2: (98304, 8192, 32768, 98304)}[RM]
NLOOP = NSTEP - 1 - (1 if opts['zend'] else 0) - (1 if opts['ystart'] else 0)


def f32(x):
    return "0x%08x" % struct.unpack('<I', struct.pack('<f', x))[0]


vK, vV = V(1), V(2)
vOFF = [V(3 + i) for i in range(4)]
vNEG = [V(7 + u) for u in range(3)]
vAL = [V(10 + u) for u in range(3)]
vMX = V(13)
vT0, vT1, vT2 = V(14), V(15), V(16)
vLANE16 = V(17)
vX = [V(18 + i) for i in range(6)]
Sx = [[V(24 + 16 * u + 4 * kt, 4) for kt in range(4)] for u in range(3)]
Ex = [[V(72 + 16 * u + 4 * kt, 4) for kt in range(4)] for u in range(3)]
Px = [[V(120 + 8 * u + 4 * t, 4) for t in range(2)] for u in range(3)]
FR = [V(144 + 4 * i, 4) for i in range(12)] + [A(240 + 4 * i, 4) for i in range(4)]
NB = 16
Ox = [[V(192 + 4 * dt, 4) for dt in range(16)], [A(96 + 4 * dt, 4) for dt in range(16)], [A(160 + 4 * dt, 4) for dt in range(16)]]
Qx = [[A(32 * u + 4 * s, 4) for s in range(8)] for u in range(3)]
Lx = [A(224 + 4 * u, 4) for u in range(3)]
ONES = A(236, 4)
sQ, sK, sV, sO = S(4, 4), S(8, 4), S(12, 4), S(16, 4)
sC = S(20)
sIT = S(21)
sKOFF, sVOFF = S(22), S(23)
sKM0, sVM0 = S(24), S(25)
sDELTA = S(26)
sFLAG = S(27)
sW = S(28)
sMASK = S(29)
sPF = S(84, 4)
sPFO = S(88)
vPF = V(0)


def dma8(kind, tag, sign=1):
    base, srd, off = (sKM0, sK, sKOFF) if kind == 'K' else (sVM0, sV, sVOFF)
    items = []
    for j in range(8):
        it = []
        ld = Inst(f"buffer_load_dwordx4 {vOFF[j % 4]}, {srd}, {off} offen offset:{(j % 4) * PIECE} lds", 'vmem',
                  rd=[vOFF[j % 4], srd, off, 'm0'], wr=[], dma=True, tag=tag, cost=opts['dcost'])
        if j == 0:
            items.append([salu(f"s_mov_b32 m0, {base}", rd=[base], wr=['m0'])])
        if j == 4:
            items.append([salu(f"s_add_u32 m0, {base}, {4 * PIECE}", rd=[base], wr=['m0', 'scc']),
                          salu(f"s_add_u32 {off}, {off}, 4096", rd=[off], wr=[off, 'scc'])])
        items.append([ld])
    fin = [salu(f"s_add_u32 {off}, {off}, {32768 - 4096}", rd=[off], wr=[off, 'scc']),
           salu(f"s_{'add' if sign > 0 else 'sub'}_u32 {base}, {base}, {sDELTA}", rd=[base, sDELTA], wr=[base, 'scc'])]
    if NSTEP > 8 or opts['skew']:
        fin.append(salu(f"s_and_b32 {off}, {off}, 0x3ffff", rd=[off], wr=[off, 'scc']))
    items.append(fin)
    return items


def touch(track=True):
    return [Inst(f"buffer_load_dword {vX[5]}, {vPF}, {sPF}, {sPFO} offen", 'vmem', rd=[vPF, sPF, sPFO], wr=[vX[5]] if track else [], tag='tch', cost=8),
            salu(f"s_add_u32 {sPFO}, {sPFO}, 32768", rd=[sPFO], wr=[sPFO, 'scc'])]


def kread(fr, kt, s, buf=0):
    return [ds_read("ds_read_b128", fr, vK, PIECE * (kt % 2) + HALF * (kt // 2) + 64 * s + buf * TILE)]


def vread(fr, dt, t, buf=0):
    return [ds_read("ds_read_b64_tr_b16", fr.sub(2 * e, 2), vV, PIECE * e + HALF * t + 32 * dt + buf * TILE) for e in range(2)]


def perm32(a, b):
    return Inst(f"v_permlane32_swap_b32 {a}, {b}", 'valu', rd=[a, b], wr=[a, b], perm=True)


def perm16(a, b):
    return Inst(f"v_permlane16_swap_b32 {a}, {b}", 'valu', rd=[a, b], wr=[a, b], perm=True)


def fma(u, kt, r):
    return valu("v_fma_f32", Ex[u][kt][r], Sx[u][kt][r], sC, vNEG[u])


def vexp(u, kt, r):
    return valu("v_exp_f32", Ex[u][kt][r], Ex[u][kt][r], trans=True)


def cvt(u, t, k):
    e = Ex[u][2 * t + k // 2]
    return valu("v_cvt_pk_bf16_f32", Px[u][t][k], e[2 * (k % 2)], e[2 * (k % 2) + 1])


def rowmax(dst, regs, tmp):
    out = []
    regs = list(regs)
    out.append(valu("v_max3_f32", dst, regs[0], regs[1], regs[2]))
    regs = regs[3:]
    while len(regs) >= 2:
        out.append(valu("v_max3_f32", dst, dst, regs[0], regs[1]))
        regs = regs[2:]
    if regs:
        out.append(valu("v_max_f32", dst, dst, regs[0]))
    out += [valu("v_mov_b32", tmp, dst), nop(1), perm32(tmp, dst), nop(0), valu("v_max_f32", dst, dst, tmp),
            valu("v_mov_b32", tmp, dst), nop(1), perm16(tmp, dst), nop(0), valu("v_max_f32", dst, dst, tmp)]
    return out


def cost(x):
    return sum(i.cost for i in x) if isinstance(x, list) else x.cost


def ismem(x):
    l = x if isinstance(x, list) else [x]
    return len(l) > 0 and l[0].kind in ('lds', 'vmem')


def schedule(mf, fixed, reserve, streams, cap):
    NM = len(mf)
    for st in streams:
        dl = NM - 1
        acc = 0
        new = []
        for it in reversed(st):
            ins, a, b = it
            if b - 1 < dl:
                dl = b - 1
                acc = 0
            acc += cost(ins)
            while acc > 6 and dl > -1:
                dl -= 1
                acc -= 6
            new.append((ins, a, b, max(dl, a)))
        st[:] = list(reversed(new))
    sufb = []
    for st in streams:
        m = 10 ** 9
        sb = [0] * len(st)
        for k in range(len(st) - 1, -1, -1):
            m = min(m, st[k][2])
            sb[k] = m
        sufb.append(sb)
    out = []
    heads = [0] * len(streams)
    load = []
    for g in range(-1, NM):
        if g >= 0:
            out.append(mf[g])
        used = reserve.get(g, 0)
        valu_seen = False
        for x in fixed.get(g, []):
            out.append(x); used += x.cost
            valu_seen |= x.kind in ('valu', 'trans')
        while True:
            cands = []
            for si, st in enumerate(streams):
                if heads[si] < len(st):
                    ins, a, b, dl = st[heads[si]]
                    if a <= g:
                        forced = (g == NM - 1) or sufb[si][heads[si]] - 1 <= g
                        mem = ismem(ins)
                        if mem and valu_seen and not forced and opts['memfirst']:
                            continue
                        if forced or (g >= 0 and (used + cost(ins) <= (cap(g) if callable(cap) else cap) or used == 0)):
                            urgent = mem and opts['memfirst'] and dl <= g + opts['memwin']
                            cands.append((0 if forced else 1, 0 if urgent else 1, dl, si))
            if not cands:
                break
            si = min(cands)[-1]
            ins = streams[si][heads[si]][0]
            lst = ins if isinstance(ins, list) else [ins]
            out += lst
            valu_seen |= any(x.kind in ('valu', 'trans') for x in lst)
            used += cost(ins)
            heads[si] += 1
        load.append(used)
    for si, st in enumerate(streams):
        assert heads[si] == len(st), (si, heads[si], len(st), st[heads[si]][0])
    return out, load


NPRE = 4


class Body:
    def __init__(self, name, qk, pv, nxt=True, dV=True, dK=True, epi=(), epi_setup=False, fin=(), qload=None, first=False, qkg=None, mbar=True, pre=(), capo=0):
        self.name = name
        self.qk, self.pv = qk, pv
        self.qkg = qkg = qkg or ([qk] if qk else [])
        self.first = first
        mf, frags, idx = [], [], {}

        def add(m, key):
            idx[key] = len(mf)
            mf.append(m)

        groups = []
        CH = opts['chain']
        for grp in qkg:
            for kt in range(4):
                for hd in range(8 // CH):
                    fids = []
                    for s in range(CH * hd, CH * hd + CH):
                        fids.append(len(frags))
                        frags.append(['K', (kt, s), len(mf) + (len(fids) - 1) // 4 * 4, None])
                    for q4 in range(0, CH, 4):
                        groups.append((len(mf) + q4, fids[q4:q4 + 4]))
                    for u in grp:
                        for j, s in enumerate(range(CH * hd, CH * hd + CH)):
                            add(mfma16(Sx[u][kt], FR[fids[j] % NB], Qx[u][s], Sx[u][kt] if s else 0), ('qk', u, kt, s))
                            frags[fids[j]][3] = len(mf) - 1
        nqk = len(mf)
        for u in pv:
            for t in range(2):
                add(mfma16(Lx[u], ONES, Px[u][t], Lx[u]), ('l', u, t))
        for dp in range(8 if pv else 0):
            fids = []
            for dt in (2 * dp, 2 * dp + 1):
                for t in range(2):
                    fids.append(len(frags))
                    frags.append(['V', (dt, t), len(mf), None])
            groups.append((len(mf), fids))
            for k, dt in enumerate((2 * dp, 2 * dp + 1)):
                for u in pv:
                    for t in range(2):
                        f = fids[2 * k + t]
                        add(mfma16(Ox[u][dt], FR[f % NB], Px[u][t], Ox[u][dt]), ('pv', u, dt, t))
                        frags[f][3] = len(mf) - 1
        nf = len(frags)
        assert nf % NB == 0
        NM = len(mf)
        END = NM
        fq, fp = len(qk) / 3.0, len(pv) / 3.0
        fixed, reserve = {}, {}
        for g0, fids in groups:
            mf[g0].extra_wait = [FR[f % NB] for f in fids]
            reserve[g0 - 1] = reserve.get(g0 - 1, 0) + 4
        gM = int(opts['gM'] * fq) if qk else -1
        if len(qkg) > 1:
            gM = NM - 6
        gS = NM - max(int(opts['gS'] * fp), 8)

        def sc(x):
            return int(x * fq) if x <= 96 else nqk + int((x - 96) * fp)
        streams = []
        st = []
        for f, (kind, args, fu, lu) in enumerate(frags):
            if qk and f < NPRE and not first:
                continue
            LD = max(int(opts['ld'] * (fq if kind == 'K' else fp)), 6)
            if len(qkg) > 1:
                LD = 8
            af = frags[f - NB][3] if f >= NB else -1
            bf = max(fu - LD + 4, af + 1)
            if kind == 'K':
                bf = max(min(bf, gM - (opts['bm'] if pv else 2)), af + 1)
                assert bf <= gM, (name, f, af, bf, gM)
                rd = kread(FR[f % NB], *args)
            else:
                af = max(af, gM)
                bf = max(bf, af + 1)
                if nxt is not None:
                    bf = max(min(bf, gS - opts['bm']), af + 1)
                    assert bf <= gS, (name, f, af, bf, gS)
                rd = vread(FR[f % NB], *args)
            af = max(af, min(fu - 2 * LD - 8, bf - 1))
            for r in rd:
                st.append((r, af, bf))
        final = []
        if nxt and not pv:
            final = [wait(tags=['Knext'], lgkm0=True), barrier()] + [kread(FR[f], 0, f)[0] for f in range(NPRE)]
        elif nxt:
            for f in range(NPRE):
                af = max(gS, frags[nf - NB + f][3])
                st.append((kread(FR[f], 0, f)[0], af, max(NM - 4, af + 1)))
        streams.append(st)
        if qk:
            fixed[gM] = [wait(tags=['Vcur'] if pv else None, lgkm0=True), barrier(), valu("v_add_u32", vK, sDELTA, vK)]
            if not mbar:
                fixed[gM] = fixed[gM][2:]
        else:
            fixed[gM] = [wait(tags=['Vcur'], lgkm0=True), barrier()]
        if nxt is not None and pv:
            fixed[gS] = [wait(tags=['Knext'] if nxt else None, lgkm0=True), barrier(), valu("v_subrev_u32", vV, sDELTA, vV)]
        st = []
        if dV:
            dv = dma8('V', 'Vnew')
            x0, x1 = sc(opts['dv0']), sc(opts['dv1'])
            for n, it in enumerate(dv):
                st.append((it, x0 + (x1 - x0) * n // len(dv), min(x1 + 4, NM)))
        if dK:
            dk = dma8('K', 'Knew')
            x0, x1 = sc(opts['dk0']), sc(opts['dk1'])
            if not pv:
                x0, x1 = gM, NM - 1
            for n, it in enumerate(dk):
                st.append((it, max(gM, x0 + (x1 - x0) * n // len(dk)), min(x1 + 4, NM)))
        if st:
            streams.append(st)
        LAT = opts['lat']
        st = []
        fl = [salu(f"s_cmp_lg_u32 {sFLAG}, 0", rd=[sFLAG], wr=['scc']),
              Inst(f"s_cbranch_scc1 L_resc_{name}", 'branch'), label(f"L_rescback_{name}")]
        self.fold = opts['fold'] and name in ('l', 'f')
        st.append((fl if (pv and not self.fold) else [], 1 if qk else -1, 6 if qk else 0))
        for t in range(2):
            for u in pv:
                bf = idx[('l', u, t)] - 1
                if u in qk:
                    bf = idx[('qk', u, 2 * t, 7)] + LAT
                for k in range(4):
                    st.append((cvt(u, t, k), -1, max(bf, 0)))
        st = [st[0]] + sorted(st[1:], key=lambda z: z[2])
        streams.append(st)
        for gi, grp in enumerate(qkg):
            mx = vMX if gi == 0 else vT2
            sfx = f"{name}{gi}"
            sa = []
            for t in range(2):
                if first and t == 0:
                    for u in grp:
                        af = min(idx[('qk', u, 1, 7)] + LAT, NM - 1)
                        ta, tb = (vT0, vT1) if gi == 0 else (vX[3], vX[4])
                        for x in rowmax(ta, [Sx[u][kt][r] for kt in (0, 1) for r in range(4)], tb):
                            sa.append((x, af, END))
                        sa.append((valu("v_mul_f32", vNEG[u], f32(-CSCALE), ta), af, END))
                        for kt in (0, 1):
                            for r in range(4):
                                sa.append((fma(u, kt, r), af, END))
                else:
                    st1 = True
                    for kt in (2 * t, 2 * t + 1):
                        for u in grp:
                            af = min(idx[('qk', u, kt, 7)] + LAT, NM - 1)
                            e = Ex[u][kt]
                            for r in range(4):
                                sa.append((fma(u, kt, r), af, END))
                            if st1:
                                sa.append((valu("v_max3_f32", mx, e[0], e[1], e[2]), af, END))
                                sa.append((valu("v_max_f32", mx, mx, e[3]), af, END))
                                st1 = False
                            else:
                                sa.append((valu("v_max3_f32", mx, mx, e[0], e[1]), af, END))
                                sa.append((valu("v_max3_f32", mx, mx, e[2], e[3]), af, END))
                    c = Inst(f"v_cmp_lt_f32 vcc, {f32(THR)}, {mx}", 'valu', rd=[mx], wr=['vcc'])
                    b = [Inst(f"s_cbranch_vccnz L_rare{t}_{sfx}", 'branch', cost=8), label(f"L_back{t}_{sfx}")]
                    if len(qkg) > 1:
                        sa.append(([c] + b, 0, END))
                        sa.append(([], 0, END))
                    else:
                        sa.append((c, 0, END))
                        sa.append((b, 0, END))
                ex = [(vexp(u, kt, r), 0, END) for kt in (2 * t, 2 * t + 1) for u in grp for r in range(4)]
                if t == 0:
                    e0 = ex
                    mark = len(sa)
                else:
                    h1 = sa[mark:-2]
                    merged = []
                    nk2 = len(h1) // 2
                    k = 3 * len(grp)
                    merged += e0[:k]
                    for j, it in enumerate(h1[:nk2]):
                        merged.append(it)
                        if j % 3 == 2 and k < len(e0):
                            merged.append(e0[k]); k += 1
                    merged += e0[k:]
                    merged += h1[nk2:]
                    sa = sa[:mark] + merged + sa[-2:] + ex
            streams.append(sa)
        if opts['l2pf'] and name == 'l':
            streams.append([(x, 40 + k, 60) for k, x in enumerate(touch())])
        if self.fold and name == 'l':
            lc = [salu(f"s_sub_u32 {sDELTA}, 0, {sDELTA}", rd=[sDELTA], wr=[sDELTA]),
                  salu(f"s_add_u32 {sIT}, {sIT}, 1", rd=[sIT], wr=[sIT]),
                  salu(f"s_lshl_b32 s47, {sFLAG}, 8"),
                  salu(f"s_or_b32 s47, s47, {sIT}"),
                  salu(f"s_cmp_lt_u32 s47, {NLOOP}")]
            streams.append([(x, NM - 6 + k, END) for k, x in enumerate(lc)])
        if qload is not None:
            streams.insert(1, qload)
        if epi or fin or epi_setup:
            epi_streams(streams, idx, NM, epi, fin, epi_setup)
        tot = sum(cost(it[0]) for st in streams for it in st) + sum(reserve.values()) + sum(cost(x) for x in fixed.values())
        cap = max(opts['cap'], 4 * int(math.ceil(tot / (4.0 * NM))))
        if not pv:
            cap = opts['pcap']
        if fin and opts['fcap']:
            cap = opts['fcap']
        if capo:
            cap = capo
        self.insts, self.load = schedule(mf, fixed, reserve, streams, cap)
        self.insts = list(pre) + self.insts
        if final:
            cut = len(self.insts) - 8
            self.insts = self.insts[:cut] + final + self.insts[cut:]
        print(name, "NM", NM, "cap", cap, "load:", "".join(str(min(x // 4, 9)) for x in self.load))

    def rare(self):
        n = self.name
        out = []
        for gi, grp in enumerate(self.qkg):
            for t in range(2):
                if self.first and t == 0:
                    continue
                out.append(label(f"L_rare{t}_{n}{gi}"))
                for u in grp:
                    regs = [Sx[u][kt][r] for kt in (2 * t, 2 * t + 1) for r in range(4)]
                    out += rowmax(vT0, regs, vT1)
                    out += [valu("v_mul_f32", vT0, f32(-CSCALE), vT0),
                            valu("v_sub_f32", vT1, vNEG[u], vT0),
                            Inst(f"v_cmp_lt_f32 vcc, {f32(THR)}, {vT1}", 'valu', rd=[vT1], wr=['vcc']),
                            nop(1),
                            Inst(f"v_cndmask_b32 {vT0}, {vNEG[u]}, {vT0}, vcc", 'valu', rd=[vT0, vNEG[u], 'vcc'], wr=[vT0]),
                            valu("v_sub_f32", vT1, vT0, vNEG[u]),
                            valu("v_exp_f32", vT1, vT1, trans=True),
                            valu("v_mov_b32", vNEG[u], vT0),
                            valu("v_mul_f32", vAL[u], vAL[u], vT1),
                            salu("s_cmp_lg_u64 vcc, 0"),
                            salu(f"s_cselect_b32 s47, {1 << u}, 0"),
                            salu(f"s_or_b32 {sFLAG}, {sFLAG}, s47")]
                    for kt in (2 * t, 2 * t + 1):
                        for r in range(4):
                            out.append(fma(u, kt, r))
                    if t == 1:
                        for kt in (0, 1):
                            for r in range(4):
                                out.append(valu("v_mul_f32", Ex[u][kt][r], Ex[u][kt][r], vT1))
                if t == 0:
                    out.append(salu(f"s_and_b32 {sFLAG}, {sFLAG}, {sMASK}"))
                    for u in grp:
                        out += [salu(f"s_bitcmp1_b32 {sMASK}, {u}"), Inst(f"s_cbranch_scc1 L_rm{u}_{n}", 'branch'),
                                valu("v_mov_b32", vAL[u], 1.0), label(f"L_rm{u}_{n}")]
                    out.append(salu(f"s_or_b32 {sMASK}, {sMASK}, {sum(1 << u for u in grp)}"))
                out += [Inst(f"s_branch L_back{t}_{n}{gi}", 'branch')]
        if self.pv and not self.fold:
            out += [label(f"L_resc_{n}"), Inst("s_call_b64 s[30:31], L_resc", 'branch'), Inst(f"s_branch L_rescback_{n}", 'branch')]
        return out


def qqdma(qq):
    base = {0: 's49', 1: 's49', 2: 's50', 3: 's49'}[qq]
    off = TILE if qq in (1, 3) else 0
    items = []
    for j in range(6):
        items.append([salu(f"s_add_u32 m0, {base}, {off + j * 1024 - qq * 128}", wr=['m0', 'scc'])])
        items.append([Inst(f"buffer_load_dwordx4 {vX[3]}, {sQ}, s{52 + j} offen offset:{qq * 128} {opts['qflag']} lds", 'vmem',
                           rd=[vX[3], sQ, 'm0'], wr=[], dma=True, tag=f"Qq{qq}", cost=4)])
    return items


def qqread(qq):
    out = []
    for u in range(3):
        for sp in range(2):
            a = (vX[0], vX[1])[sp] if qq != 2 else (vX[2], vX[5])[sp]
            out.append(ds_read("ds_read_b128", Qx[u][2 * qq + sp], a, (TILE if qq in (1, 3) else 0) + 2048 * u))
    return out


class YBody(Body):
    def __init__(self, name):
        self.name = name
        U = (0, 1, 2)
        self.qk, self.pv, self.qkg, self.first, self.fold = U, (), [U], False, True
        mf, frags, idx, groups = [], [], {}, []
        qstart = []

        def add(m, key):
            idx[key] = len(mf)
            mf.append(m)
        for qq in range(4):
            qstart.append(len(mf))
            for tile in range(2):
                acc = Ex if tile == 0 else Sx
                for kp in range(2):
                    fids = []
                    for kt in (2 * kp, 2 * kp + 1):
                        for s in (2 * qq, 2 * qq + 1):
                            fids.append(len(frags))
                            frags.append(['K', (kt, s, tile), len(mf), None])
                    groups.append((len(mf), fids))
                    for k, kt in enumerate((2 * kp, 2 * kp + 1)):
                        for u in U:
                            for j, s in enumerate((2 * qq, 2 * qq + 1)):
                                f = fids[2 * k + j]
                                add(mfma16(acc[u][kt], FR[f % NB], Qx[u][s], acc[u][kt] if s else 0), ('qk', tile, u, kt, s))
                                frags[f][3] = len(mf) - 1
        nqk = len(mf)
        for u in U:
            for t in range(2):
                add(mfma16(Lx[u], ONES, Px[u][t], Lx[u]), ('l', u, t))
        for dp in range(8):
            fids = []
            for dt in (2 * dp, 2 * dp + 1):
                for t in range(2):
                    fids.append(len(frags))
                    frags.append(['V', (dt, t), len(mf), None])
            groups.append((len(mf), fids))
            for k, dt in enumerate((2 * dp, 2 * dp + 1)):
                for u in U:
                    for t in range(2):
                        f = fids[2 * k + t]
                        add(mfma16(Ox[u][dt], FR[f % NB], Px[u][t], Ox[u][dt]), ('pv', u, dt, t))
                        frags[f][3] = len(mf) - 1
        nf, NM = len(frags), len(mf)
        END = NM
        fixed, reserve = {}, {}
        for g0, fids in groups:
            mf[g0].extra_wait = [FR[f % NB] for f in fids]
            reserve[g0 - 1] = reserve.get(g0 - 1, 0) + 4
        gM = nqk - 14
        gS = NM - opts['gS']
        LD = opts['ld']
        st = []
        for f, (kind, args, fu, lu) in enumerate(frags):
            af = frags[f - NB][3] if f >= NB else -1
            bf = max(fu - LD + 4, af + 1)
            if kind == 'K':
                bf = max(min(bf, gM - 6), af + 1)
                assert bf <= gM
                rd = kread(FR[f % NB], *args)
            else:
                af = max(af, gM)
                bf = max(min(max(bf, af + 1), gS - opts['bm']), af + 1)
                rd = vread(FR[f % NB], *args)
            af = max(af, min(fu - 2 * LD - 8, bf - 1))
            for r in rd:
                st.append((r, af, bf))
        for f in range(NPRE):
            af = max(gS, frags[nf - NB + f][3])
            st.append((kread(FR[f], 0, f)[0], af, max(NM - 4, af + 1)))
        streams = [st]
        for qq in range(1, 4):
            fixed[qstart[qq] - 5] = stamp(19 + qq) + [wait(tags=[f"Qq{qq}"])] + qqread(qq)
        fixed[gM] = [wait(tags=['V0'], lgkm0=True), barrier()]
        fixed[gS] = [wait(tags=['K2'], lgkm0=True), barrier(), valu("v_add_u32", vV, sDELTA, vV)]
        q3 = qqdma(3)
        q3[0][0].extra_wait = [Qx[2][3]]
        st = [(it, qstart[1] + 1 + n, qstart[2] - 6) for n, it in enumerate(q3)]
        st += [(it, qstart[1] + 16 + 3 * n, qstart[3] - 6) for n, it in enumerate(dma8('V', 'V0'))]
        st += [(it, gM + 1 + 3 * n, gS) for n, it in enumerate(dma8('K', 'K2'))]
        st += [(it, gM + 36 + 3 * n, gS) for n, it in enumerate(dma8('V', 'Vnew', -1))]
        st += [(it, gM + 70 + 3 * n, END - 2) for n, it in enumerate(dma8('K', 'Knew', -1))]
        streams.append(st)
        LAT = opts['lat']
        sa = []
        for u in U:
            af = idx[('qk', 0, u, 3, 7)] + LAT
            bf = idx[('l', u, 0)] - 1
            regs = [Ex[u][kt][r] for kt in range(4) for r in range(4)]
            for x in rowmax(vT0, regs, vT1):
                sa.append((x, af, bf))
            sa.append((valu("v_mul_f32", vNEG[u], f32(-CSCALE), vT0), af, bf))
            for x in regs:
                sa.append((valu("v_fma_f32", x, x, sC, vNEG[u]), af, bf))
            for kt in range(4):
                for r in range(4):
                    sa.append((vexp(u, kt, r), af, bf))
            for t in range(2):
                for k in range(4):
                    sa.append((cvt(u, t, k), af, bf))
        for t in range(2):
            st1 = True
            for kt in (2 * t, 2 * t + 1):
                for u in U:
                    af = idx[('qk', 1, u, kt, 7)] + LAT
                    e = Ex[u][kt]
                    for r in range(4):
                        sa.append((fma(u, kt, r), af, END))
                    if st1:
                        sa.append((valu("v_max3_f32", vMX, e[0], e[1], e[2]), af, END))
                        sa.append((valu("v_max_f32", vMX, vMX, e[3]), af, END))
                        st1 = False
                    else:
                        sa.append((valu("v_max3_f32", vMX, vMX, e[0], e[1]), af, END))
                        sa.append((valu("v_max3_f32", vMX, vMX, e[2], e[3]), af, END))
            sa.append((Inst(f"v_cmp_lt_f32 vcc, {f32(THR)}, {vMX}", 'valu', rd=[vMX], wr=['vcc']), 0, END))
            sa.append(([Inst(f"s_cbranch_vccnz L_rare{t}_{name}0", 'branch', cost=4), label(f"L_back{t}_{name}0")], 0, END))
            sa += [(vexp(u, kt, r), 0, END) for kt in (2 * t, 2 * t + 1) for u in U for r in range(4)]
        streams.append(sa)

        def cap(g):
            return 8 if g < qstart[3] + 20 else (opts['ycap2'] if g < nqk + 6 else opts['ycap'])
        self.insts, self.load = schedule(mf, fixed, reserve, streams, cap)
        self.insts += [salu(f"s_cmp_eq_u32 {sFLAG}, 0"), Inst("s_cbranch_scc1 L_ynoresc", 'branch'),
                       Inst("s_call_b64 s[30:31], L_resc", 'branch'), label("L_ynoresc")]
        print(name, "NM", NM, "load:", "".join(str(min(x // 4, 9)) for x in self.load))


class ZBody(Body):
    def __init__(self, name):
        self.name = name
        U = (0, 1, 2)
        self.qk, self.pv, self.qkg, self.first, self.fold = U, U, [U], False, True
        P2 = [[Sx[u][t] for t in range(2)] for u in U]
        mf, frags, idx, groups = [], [], {}, []

        def add(m, key):
            idx[key] = len(mf)
            mf.append(m)
        for kt in range(4):
            for hd in range(2):
                fids = []
                for s in range(4 * hd, 4 * hd + 4):
                    fids.append(len(frags))
                    frags.append(['K', (kt, s), len(mf), None])
                groups.append((len(mf), fids))
                for u in U:
                    for j, s in enumerate(range(4 * hd, 4 * hd + 4)):
                        add(mfma16(Sx[u][kt], FR[fids[j] % NB], Qx[u][s], Sx[u][kt] if s else 0), ('qk', u, kt, s))
                        frags[fids[j]][3] = len(mf) - 1
        nqk = len(mf)

        def pvgroup(items):
            fids = []
            for it in items:
                fids.append(len(frags))
                frags.append(['V', it, len(mf), None])
            groups.append((len(mf), fids))
            for dt in sorted(set(it[0] for it in items)):
                for u in U:
                    for k, (d2, t, tile) in enumerate(items):
                        if d2 == dt:
                            add(mfma16(Ox[u][dt], FR[fids[k] % NB], (Px if tile == 0 else P2)[u][t], Ox[u][dt]), ('pv', u, dt, t, tile))
                            frags[fids[k]][3] = len(mf) - 1
        for u in U:
            for t in range(2):
                add(mfma16(Lx[u], ONES, Px[u][t], Lx[u]), ('l', u, t, 0))
        for dp in range(2):
            pvgroup([(dt, t, 0) for dt in (2 * dp, 2 * dp + 1) for t in range(2)])
        n7 = len(mf)
        for u in U:
            for t in range(2):
                add(mfma16(Lx[u], ONES, P2[u][t], Lx[u]), ('l', u, t, 1))
        for dp in range(2):
            pvgroup([(dt, t, 1) for dt in (2 * dp, 2 * dp + 1) for t in range(2)])
        for dt in range(4, 16):
            pvgroup([(dt, t, tile) for tile in range(2) for t in range(2)])
        nf, NM = len(frags), len(mf)
        END = NM
        fixed, reserve = {}, {}
        for g0, fids in groups:
            mf[g0].extra_wait = [FR[f % NB] for f in fids]
            reserve[g0 - 1] = reserve.get(g0 - 1, 0) + 4
        gM = opts['gM']
        gM2 = n7 - 8
        LD = opts['ld']
        st = []
        for f, (kind, args, fu, lu) in enumerate(frags):
            if f < NPRE:
                continue
            af = frags[f - NB][3] if f >= NB else -1
            bf = max(fu - LD + 4, af + 1)
            if kind == 'K':
                bf = max(min(bf, gM - opts['bm']), af + 1)
                rd = kread(FR[f % NB], *args)
            else:
                af = max(af, gM if f < 40 else gM2)
                bf = max(bf, af + 1)
                rd = vread(FR[f % NB], *args)
            af = max(af, min(fu - 2 * LD - 8, bf - 1))
            for r in rd:
                st.append((r, af, bf))
        streams = [st]
        fixed[gM] = [wait(tags=['Vcur'], lgkm0=True), barrier()]
        fixed[gM2] = [wait(vm0=True), barrier()]
        streams.append([(it, 1 + 4 * n, 60) for n, it in enumerate(dma8('V', 'Vlast'))])
        LAT = opts['lat']
        st = []
        for t in range(2):
            for u in U:
                for k in range(4):
                    st.append((cvt(u, t, k), -1, idx[('qk', u, 2 * t, 7)] + LAT))
        streams.append(sorted(st, key=lambda z: z[2]))
        sa = []
        DL = n7 - 1
        for t in range(2):
            st1 = True
            for kt in (2 * t, 2 * t + 1):
                for u in U:
                    af = idx[('qk', u, kt, 7)] + LAT
                    e = Ex[u][kt]
                    for r in range(4):
                        sa.append((fma(u, kt, r), af, DL))
                    if st1:
                        sa.append((valu("v_max3_f32", vMX, e[0], e[1], e[2]), af, DL))
                        sa.append((valu("v_max_f32", vMX, vMX, e[3]), af, DL))
                        st1 = False
                    else:
                        sa.append((valu("v_max3_f32", vMX, vMX, e[0], e[1]), af, DL))
                        sa.append((valu("v_max3_f32", vMX, vMX, e[2], e[3]), af, DL))
            sa.append((Inst(f"v_cmp_lt_f32 vcc, {f32(THR)}, {vMX}", 'valu', rd=[vMX], wr=['vcc']), 0, DL))
            sa.append(([Inst(f"s_cbranch_vccnz L_rare{t}_{name}0", 'branch', cost=4), label(f"L_back{t}_{name}0")], 0, DL))
            ex = [(vexp(u, kt, r), 0, DL) for kt in (2 * t, 2 * t + 1) for u in U for r in range(4)]
            if t == 0:
                e0, mark = ex, len(sa)
            else:
                h1 = sa[mark:-2]
                nk2 = len(h1) // 2
                merged, k = e0[:9], 9
                for j, it in enumerate(h1[:nk2]):
                    merged.append(it)
                    if j % 3 == 2 and k < len(e0):
                        merged.append(e0[k]); k += 1
                merged += e0[k:] + h1[nk2:]

                def c2(u, t_, k_):
                    e = Ex[u][2 * t_ + k_ // 2]
                    return valu("v_cvt_pk_bf16_f32", P2[u][t_][k_], e[2 * (k_ % 2)], e[2 * (k_ % 2) + 1])
                cv0 = [(c2(u, 0, k_), 0, DL) for u in U for k_ in range(4)]
                cv1 = [(c2(u, 1, k_), 0, DL) for u in U for k_ in range(4)]
                mix = []
                for j, it in enumerate(ex):
                    mix.append(it)
                    if j % 2 == 1:
                        mix.append(cv0[j // 2])
                sa = sa[:mark] + merged + sa[-2:] + mix + cv1
        sa.append(([salu(f"s_cmp_lg_u32 {sFLAG}, 0", rd=[sFLAG], wr=['scc']),
                    Inst(f"s_cbranch_scc1 L_resc_{name}", 'branch'), label(f"L_rescback_{name}")], n7 - 1, n7))
        streams.append(sa)
        global inv, tmpf, pk_t, rd_all
        inv = [R('v', vAL[u].lo, 1) for u in U]
        tmpf = [V(72 + i) for i in range(32)]
        pk_t = [V(104 + 2 * i, 2) for i in range(8)]
        rd_all = [Sx[u][kt] for u in U for kt in (2, 3)]
        idx2 = {}
        for u in U:
            idx2[('l', u, 1)] = idx[('l', u, 1, 1)]
            for dt in range(16):
                idx2[('pv', u, dt, 1)] = idx[('pv', u, dt, 1, 1)]
        epi_streams(streams, idx2, NM, (), U, True)

        def cap(g):
            return opts['zcap1'] if g < nqk else (opts['zcap2'] if g < n7 + 24 else opts['zcap3'])
        self.insts, self.load = schedule(mf, fixed, reserve, streams, cap)
        print(name, "NM", NM, "load:", "".join(str(min(x // 4, 9)) for x in self.load))

    def rare(self):
        out = Body.rare(self)
        n = self.name
        out += [label(f"L_resc_{n}"), nop(15)]
        for u in range(3):
            out += [salu(f"s_bitcmp1_b32 {sFLAG}, {u}"), Inst(f"s_cbranch_scc0 L_zp{u}", 'branch')]
            for t in range(2):
                for k in range(4):
                    p = Px[u][t][k]
                    out += [valu("v_lshlrev_b32", vT0, 16, p), valu("v_and_b32", vT1, "0xffff0000", p),
                            valu("v_mul_f32", vT0, vT0, vAL[u]), valu("v_mul_f32", vT1, vT1, vAL[u]),
                            valu("v_cvt_pk_bf16_f32", p, vT0, vT1)]
            out.append(label(f"L_zp{u}"))
        out += [Inst("s_call_b64 s[30:31], L_resc", 'branch'), Inst(f"s_branch L_rescback_{n}", 'branch')]
        return out


class RBody(Body):
    def __init__(self, name):
        self.name = name
        self.pv = ()
        self.sites = []
        mf, frags, idx, groups = [], [], {}, []
        passes = [((0, 1), 0), ((0, 1), 1), ((2,), 0), ((2,), 1)]
        pstart = []

        def add(m, key):
            idx[key] = len(mf)
            mf.append(m)
        for grp, tile in passes:
            pstart.append(len(mf))
            for kt in range(4):
                for hd in range(2):
                    fids = []
                    for s in range(4 * hd, 4 * hd + 4):
                        fids.append(len(frags))
                        frags.append(['K', (kt, s, tile), len(mf), None])
                    groups.append((len(mf), fids))
                    for u in grp:
                        for j, s in enumerate(range(4 * hd, 4 * hd + 4)):
                            add(mfma16(Sx[u][kt], FR[fids[j] % NB], Qx[u][s], Sx[u][kt] if s else 0), ('qk', tile, u, kt, s))
                            frags[fids[j]][3] = len(mf) - 1
        nqk = len(mf)
        U = (0, 1, 2)
        for u in U:
            for t in range(2):
                add(mfma16(Lx[u], ONES, Px[u][t], Lx[u]), ('l', u, t))
        for dp in range(8):
            fids = []
            for dt in (2 * dp, 2 * dp + 1):
                for t in range(2):
                    fids.append(len(frags))
                    frags.append(['V', (dt, t), len(mf), None])
            groups.append((len(mf), fids))
            for k, dt in enumerate((2 * dp, 2 * dp + 1)):
                for u in U:
                    for t in range(2):
                        f = fids[2 * k + t]
                        add(mfma16(Ox[u][dt], FR[f % NB], Px[u][t], Ox[u][dt]), ('pv', u, dt, t))
                        frags[f][3] = len(mf) - 1
        nf, NM = len(frags), len(mf)
        END = NM
        fixed, reserve = {}, {}
        for g0, fids in groups:
            mf[g0].extra_wait = [FR[f % NB] for f in fids]
            reserve[g0 - 1] = reserve.get(g0 - 1, 0) + 4
        gK1 = pstart[1] - 14
        gQ2 = pstart[2] - 8
        gA = pstart[3] - 5
        gM = nqk - 5
        gS = NM - opts['gS']
        st = []
        for f, (kind, args, fu, lu) in enumerate(frags):
            p = f // 32
            LD = 9 if p < 2 else (7 if p < 4 else opts['ld'])
            af = frags[f - NB][3] if f >= NB else -1
            bf = max(fu - LD + 4, af + 1)
            if p == 1:
                af = max(af, gK1)
            if p == 2:
                bf = max(min(bf, gA - 1), af + 1)
                assert bf <= gA
            if p == 3:
                bf = max(min(bf, gM - 1), af + 1)
                assert bf <= gM
            if kind == 'V':
                af = max(af, gM)
                bf = max(min(max(bf, af + 1), gS - 2), af + 1)
            bf = max(bf, af + 1)
            af = max(af, min(fu - 2 * LD - 8, bf - 1))
            rd = kread(FR[f % NB], *args) if kind == 'K' else vread(FR[f % NB], *args)
            for r in rd:
                st.append((r, af, bf))
        for f in range(NPRE):
            af = max(gS, frags[nf - NB + f][3])
            st.append((kread(FR[f], 0, f)[0], af, max(NM - 4, af + 1)))
        streams = [st]
        fixed[gK1] = [wait(tags=['K1']), barrier()]
        fixed[gQ2] = stamp(21) + [wait(tags=['Q2'])] + stamp(22) + [ds_read("ds_read_b128", Qx[2][s_], vX[1], 64 * s_) for s_ in range(8)]
        fixed[gA] = [wait(lgkm0=True), barrier()]
        fixed[gM] = [wait(tags=['V0'], lgkm0=True), barrier()]
        fixed[gS] = [wait(tags=['K2'], lgkm0=True), barrier(), valu("v_add_u32", vV, sDELTA, vV)]
        q2 = qdma(2, 3)
        q2[0].extra_wait = [Qx[1][7]]
        st = [([x], 1 + 2 * n, gQ2) for n, x in enumerate(q2)]
        st += [(it, opts['rv0'] + 4 * n, gQ2) for n, it in enumerate(dma8('V', 'V0'))]
        st += [(it, gA + 2 * n, gM) for n, it in enumerate(dma8('K', 'K2'))]
        st += [(it, gM + 4 + 3 * n, gS) for n, it in enumerate(dma8('V', 'Vnew', -1))]
        st += [(it, gM + 40 + 3 * n, END - 2) for n, it in enumerate(dma8('K', 'Knew', -1))]
        streams.append(st)
        LAT = opts['lat']
        for gi, grp in enumerate(((0, 1), (2,))):
            mx = vMX if gi == 0 else vT2
            ta, tb = (vT0, vT1) if gi == 0 else (vX[3], vX[4])
            sa = []
            for tile in range(2):
                def rdy(u, kt):
                    return min(idx[('qk', tile, u, kt, 7)] + LAT, NM - 1)

                def dead(u, kt):
                    return idx[('qk', 1, u, kt, 0)] if tile == 0 else END
                pneed = min(idx[('l', u, 0)] for u in grp) - 1 if tile == 0 else END
                for t in range(2):
                    if tile == 0 and t == 0:
                        for u in grp:
                            af, bf = rdy(u, 1), dead(u, 0)
                            for x in rowmax(ta, [Sx[u][kt][r] for kt in (0, 1) for r in range(4)], tb):
                                sa.append((x, af, bf))
                            sa.append((valu("v_mul_f32", vNEG[u], f32(-CSCALE), ta), af, bf))
                            for kt in (0, 1):
                                for r in range(4):
                                    sa.append((fma(u, kt, r), af, dead(u, kt)))
                    else:
                        st1 = True
                        dl = min(dead(u, 2 * t) for u in grp)
                        for kt in (2 * t, 2 * t + 1):
                            for u in grp:
                                af = rdy(u, kt)
                                e = Ex[u][kt]
                                for r in range(4):
                                    sa.append((fma(u, kt, r), af, dl))
                                if st1:
                                    sa.append((valu("v_max3_f32", mx, e[0], e[1], e[2]), af, dl))
                                    sa.append((valu("v_max_f32", mx, mx, e[3]), af, dl))
                                    st1 = False
                                else:
                                    sa.append((valu("v_max3_f32", mx, mx, e[0], e[1]), af, dl))
                                    sa.append((valu("v_max3_f32", mx, mx, e[2], e[3]), af, dl))
                        sfx = f"{name}{gi}{tile}"
                        self.sites.append((grp, t, sfx, tile))
                        c = Inst(f"v_cmp_lt_f32 vcc, {f32(THR)}, {mx}", 'valu', rd=[mx], wr=['vcc'])
                        sa.append(([c, Inst(f"s_cbranch_vccnz L_rare{t}_{sfx}", 'branch', cost=0), label(f"L_back{t}_{sfx}")], 0, dl))
                    for kt in (2 * t, 2 * t + 1):
                        for u in grp:
                            for r in range(4):
                                sa.append((vexp(u, kt, r), 0, pneed))
                if tile == 0:
                    for u in grp:
                        for t in range(2):
                            for k in range(4):
                                sa.append((cvt(u, t, k), 0, pneed))
            streams.append(sa)
        self.insts, self.load = schedule(mf, fixed, reserve, streams, opts['rcap'])
        print(name, "NM", NM, "load:", "".join(str(min(x // 4, 9)) for x in self.load))

    def rare(self):
        out = []
        x0, x1 = vX[2], vX[5]
        for grp, t, sfx, tile in self.sites:
            out.append(label(f"L_rare{t}_{sfx}"))
            for u in grp:
                regs = [Sx[u][kt][r] for kt in (2 * t, 2 * t + 1) for r in range(4)]
                out += rowmax(x0, regs, x1)
                out += [valu("v_mul_f32", x0, f32(-CSCALE), x0),
                        valu("v_sub_f32", x1, vNEG[u], x0),
                        Inst(f"v_cmp_lt_f32 vcc, {f32(THR)}, {x1}", 'valu', rd=[x1], wr=['vcc']),
                        nop(1),
                        Inst(f"v_cndmask_b32 {x0}, {vNEG[u]}, {x0}, vcc", 'valu', rd=[x0, vNEG[u], 'vcc'], wr=[x0]),
                        valu("v_sub_f32", x1, x0, vNEG[u]),
                        valu("v_exp_f32", x1, x1, trans=True),
                        valu("v_mov_b32", vNEG[u], x0)]
                if tile == 1:
                    out += [valu("v_mul_f32", vAL[u], vAL[u], x1),
                            salu("s_cmp_lg_u64 vcc, 0"),
                            salu(f"s_cselect_b32 s47, {1 << u}, 0"),
                            salu(f"s_or_b32 {sFLAG}, {sFLAG}, s47")]
                for kt in (2 * t, 2 * t + 1):
                    for r in range(4):
                        out.append(fma(u, kt, r))
                if t == 1:
                    for kt in (0, 1):
                        for r in range(4):
                            out.append(valu("v_mul_f32", Ex[u][kt][r], Ex[u][kt][r], x1))
            out += [Inst(f"s_branch L_back{t}_{sfx}", 'branch')]
        return out


def resc_common():
    out = [label("L_resc"), nop(15)]
    for u in range(3):
        out += [salu(f"s_bitcmp1_b32 {sFLAG}, {u}"), Inst(f"s_cbranch_scc0 L_resc{u}", 'branch')]
        regs = [Ox[u][dt][r] for dt in range(16) for r in range(4)] + [Lx[u][r] for r in range(4)]
        for x in regs:
            if x.f == 'v':
                out.append(valu("v_mul_f32", x, x, vAL[u]))
            else:
                out += [valu("v_accvgpr_read_b32", vT0, x), valu("v_mul_f32", vT0, vT0, vAL[u]), valu("v_accvgpr_write_b32", x, vT0)]
        out += [valu("v_mov_b32", vAL[u], 1.0), label(f"L_resc{u}")]
    out += [salu(f"s_mov_b32 {sFLAG}, 0"), nop(3), Inst("s_setpc_b64 s[30:31]", 'branch')]
    return out


def stamp(k):
    if not opts['stamp']:
        return []
    return [raw("s_memtime s[60:61]", 'smem'), raw("s_waitcnt lgkmcnt(0)", 'salu'), salu(f"s_mov_b32 s{64 + k}, s60")]


def rstamp(k):
    if not opts['stamp']:
        return []
    return [raw("s_memrealtime s[60:61]", 'smem'), raw("s_waitcnt lgkmcnt(0)", 'salu'), salu(f"s_mov_b32 s{64 + k}, s60")]


def stamp_shift():
    if not opts['stamp']:
        return []
    o = [raw("s_memtime s[60:61]", 'smem')]
    for k in range(9, 3, -1):
        o.append(salu(f"s_mov_b32 s{64 + k}, s{63 + k}"))
    o += [raw("s_waitcnt lgkmcnt(0)", 'salu'), salu("s_mov_b32 s67, s60")]
    return o


def stamp_out():
    if not opts['stamp']:
        return []
    o = [raw("s_waitcnt vmcnt(0)", 'salu')] + stamp(11) + rstamp(13)
    o += [raw("s_load_dwordx2 s[60:61], s[0:1], 40", 'smem'), raw("s_waitcnt lgkmcnt(0)", 'salu'),
          salu("s_mov_b32 s62, 0x100000"), salu("s_mov_b32 s63, 0x20000")]
    for k in range(32):
        o.append(raw(f"v_writelane_b32 v0, s{64 + k}, {k}", 'valu'))
    o += [salu(f"s_lshl_b32 s44, s2, 2"), salu(f"s_add_u32 s44, s44, {sW}"), salu("s_lshl_b32 s44, s44, 8"),
          valu("v_lshrrev_b32", V(1), 2, vLANE16), nop(4),
          raw("buffer_store_dword v0, v1, s[60:63], s44 offen", 'vmem')]
    if opts['stamp'] >= 2:
        sel = [16, 17, 18, 19, 1, 9, 8, 7, 3, 10, 11]
        for k, r in enumerate(sel):
            o += [salu(f"s_sub_u32 s47, s{64 + r}, s64"), raw(f"v_writelane_b32 v0, s47, {k}", 'valu')]
        for k, r in enumerate([14, 15, 13]):
            o += [salu(f"s_sub_u32 s47, s{64 + r}, s76"), raw(f"v_writelane_b32 v0, s47, {11 + k}", 'valu')]
        o += [salu(f"s_cmp_lg_u32 s44, {(opts['stamp'] - 2) * 1024}"), Inst("s_cbranch_scc1 L_end", 'branch'),
              raw("s_load_dwordx2 s[60:61], s[0:1], 32", 'smem'), raw("s_waitcnt lgkmcnt(0)", 'salu'),
              salu("s_mov_b32 s62, 64"), salu("s_mov_b32 s63, 0x20000"), nop(4),
              raw("buffer_store_dword v0, v1, s[60:63], 0 offen", 'vmem')]
    return o


def flat(x):
    o = []
    for it in x:
        o += it if isinstance(it, list) else [it]
    return o


def interleave(main, fill, every=1, start=0):
    out = []
    k = 0
    for i, x in enumerate(main):
        out.append(x)
        if i >= start and (i - start) % every == 0 and k < len(fill):
            out += fill[k] if isinstance(fill[k], list) else [fill[k]]
            k += 1
    for x in fill[k:]:
        out += x if isinstance(x, list) else [x]
    return out


def prologue():
    o = []
    a = o.append
    a(salu("s_cmp_ge_u32 s2, 256"))
    a(Inst("s_cbranch_scc1 L_end", 'branch'))
    o += stamp(0) + rstamp(12)
    a(raw("s_load_dwordx4 s[36:39], s[0:1], 0", 'smem'))
    a(raw("s_load_dwordx4 s[40:43], s[0:1], 16", 'smem'))
    if opts['pf']:
        a(salu("s_getpc_b64 s[50:51]"))
        a(valu("v_lshlrev_b32", V(1), 4, V(0)))
        for j in range(opts['pf']):
            a(Inst(f"global_load_dwordx4 {Ex[j // 4][j % 4]}, v1, s[50:51]", 'vmem', rd=[V(1)], wr=[Ex[j // 4][j % 4]], tag='pf'))
            a(valu("v_add_u32", V(1), 4096, V(1)))
    z = FR[0]
    for r in range(4):
        a(valu("v_mov_b32", z[r], 0))
    zero = [mfma(V(192 + 16 * i, 16), z, z, 0) for i in range(4)] + [mfma(A(96 + 16 * i, 16), z, z, 0) for i in range(9)]
    c = []
    a = c.append
    a(salu("s_and_b32 s32, s2, 7"))
    a(salu("s_lshr_b32 s33, s2, 3"))
    a(salu("s_lshl_b32 s32, s32, 3"))
    a(salu("s_lshr_b32 s34, s33, 2"))
    a(salu("s_add_u32 s32, s32, s34"))
    a(salu("s_and_b32 s33, s33, 3"))
    a(salu("s_lshl_b32 s34, s32, 18"))
    a(salu("s_mul_i32 s35, s32, 393216"))
    a(salu(f"s_mul_i32 s33, s33, {SUBS}"))
    a(salu("s_add_u32 s35, s35, s33"))
    t0, t1, t2 = vT0, vT1, vT2
    a(valu("v_lshrrev_b32", t0, 6, V(0)))
    a(valu("v_and_b32", V(0), 63, V(0)))
    a(Inst(f"v_readfirstlane_b32 {sW}, {t0}", 'valu', rd=[t0], wr=[sW], rfl=True))
    a(valu("v_lshlrev_b32", vLANE16, 4, V(0)))
    a(salu(f"s_mov_b32 {sKOFF}, 0", wr=[sKOFF]))
    a(salu(f"s_mov_b32 {sVOFF}, 0", wr=[sVOFF]))
    a(salu(f"s_lshl_b32 s47, {sW}, 13", rd=[sW]))
    a(valu("v_add_u32", vOFF[3], S(47), vLANE16))
    for j in range(3):
        a(valu("v_add_u32", vOFF[j], 16 * (3 - j), vOFF[3]))
    a(salu(f"s_mul_i32 {sKM0}, {sW}, {8 * PIECE}", rd=[sW], wr=[sKM0]))
    a(salu(f"s_add_u32 {sVM0}, {sKM0}, {VBUF0}", rd=[sKM0], wr=[sVM0]))
    a(salu(f"s_mov_b32 {sDELTA}, {TILE}", wr=[sDELTA]))
    a(salu(f"s_mul_i32 s49, {sW}, {WAVS - 8192}", rd=[sW]))
    def rowpart(dst, m):
        a(valu("v_and_b32", dst, 7, m))
        a(valu("v_mul_u32_u24", dst, 2 * PIECE, dst))
        a(valu("v_lshrrev_b32", t2, 1, m))
        a(valu("v_xor_b32", t2, t2, m))
        a(valu("v_bfe_u32", t2, t2, 2, 1))
        a(valu("v_lshl_add_u32", dst, t2, 9, dst))
    a(valu("v_and_b32", t1, 15, V(0)))
    rowpart(t0, t1)
    a(valu("v_lshrrev_b32", t1, 4, V(0)))
    a(valu("v_lshl_add_u32", vK, t1, 4, t0))
    a(valu("v_lshrrev_b32", t1, 2, V(0)))
    rowpart(t0, t1)
    a(valu("v_and_b32", t1, 3, V(0)))
    a(valu("v_lshl_add_u32", t0, t1, 3, t0))
    a(valu("v_add_u32", vV, VBUF0, t0))
    a(valu("v_and_b32", t0, 15, V(0)))
    a(valu("v_lshlrev_b32", t0, 9, t0))
    a(valu("v_lshrrev_b32", t1, 4, V(0)))
    a(valu("v_lshl_add_u32", t0, t1, 4, t0))
    a(salu(f"s_mul_i32 s47, {sW}, 24576", rd=[sW]))
    a(salu("s_add_u32 s47, s47, 48"))
    a(valu("v_add_u32", vX[0], S(47), t0))
    for u in range(3):
        a(salu(f"s_mov_b32 s{44 + u}, {u * 8192}"))
        a(valu("v_mov_b32", vNEG[u], "0x7f800000"))
    for kt in range(4):
        for r in range(4):
            a(valu("v_mov_b32", Ex[2][kt][r], 0))
    a(salu(f"s_mov_b32 {sMASK}, {3 if opts['skew'] else 7}"))
    a(salu(f"s_mov_b32 {sC}, {f32(CSCALE)}", wr=[sC]))
    a(salu(f"s_mov_b32 {sFLAG}, 0", wr=[sFLAG]))
    a(salu(f"s_mov_b32 {sIT}, 0", wr=[sIT]))
    a(salu("s_mov_b32 s47, 0x3f803f80"))
    for u in range(3):
        a(valu("v_mov_b32", vAL[u], 1.0))
    o += interleave(c, zero, every=5, start=1)
    a = o.append
    a(nop(7))
    for r in range(4):
        a(valu("v_accvgpr_write_b32", ONES[r], S(47)))
    a(raw("s_waitcnt lgkmcnt(0)", 'salu'))
    o += stamp(16)
    for srd, ptr, off, size, bias in ((sK, 38, 's34', 262144, 48), (sQ, 36, 's35', QSZ, 48), (sV, 40, 's34', 262144, 48), (sO, 42, 's35', QSZ, 0)):
        a(salu(f"s_add_u32 s{srd.lo}, s{ptr}, {off}", wr=[srd[0]]))
        a(salu(f"s_addc_u32 s{srd.lo + 1}, s{ptr + 1}, 0", wr=[srd[1]]))
        if bias:
            a(salu(f"s_sub_u32 s{srd.lo}, s{srd.lo}, {bias}", wr=[srd[0]]))
            a(salu(f"s_subb_u32 s{srd.lo + 1}, s{srd.lo + 1}, 0", wr=[srd[1]]))
        a(salu(f"s_mov_b32 s{srd.lo + 2}, {size + bias}", wr=[srd[2]]))
        a(salu(f"s_mov_b32 s{srd.lo + 3}, 0x20000", wr=[srd[3]]))

    o += flat(dma8('K', 'K0'))
    if opts['qdirect']:
        for s_ in range(8):
            for u in (0, 1):
                a(qload(u, s_))
        o += stamp(17)
        for s_ in range(8):
            a(qload(2, s_))
        o += stamp(18)
        a(wait(tags=['K0']))
        a(barrier())
        o += stamp(19)
        return o

    if opts['ystart']:
        t0, t1 = vT0, vT1
        a(valu("v_lshrrev_b32", t0, 3, V(0)))
        a(valu("v_and_b32", t1, 6, t0))
        a(valu("v_xor_b32", t1, t1, V(0)))
        a(valu("v_and_b32", t1, 7, t1))
        a(valu("v_lshlrev_b32", t0, 9, t0))
        a(valu("v_lshl_add_u32", t0, t1, 4, t0))
        a(salu(f"s_mul_i32 s47, {sW}, 24576", rd=[sW]))
        a(salu("s_add_u32 s47, s47, 48"))
        a(valu("v_add_u32", vX[3], S(47), t0))
        a(salu(f"s_mov_b32 s49, {sVM0}"))
        a(salu(f"s_mul_i32 s50, {sW}, 7680", rd=[sW]))
        a(salu(f"s_add_u32 s50, s50, {SPARE}"))
        for g in range(6):
            a(salu(f"s_mov_b32 s{52 + g}, {g * 4096}"))
        if opts.get('k1late', 0):
            o += flat(qqdma(0))
            o += flat(dma8('K', 'K1', -1))
        else:
            o += flat(dma8('K', 'K1', -1))
            o += flat(qqdma(0))
        o += flat(qqdma(1))
        o += stamp(17)
        o += flat(qqdma(2))
        o += stamp(18)
        a(valu("v_and_b32", t0, 15, V(0)))
        a(valu("v_lshlrev_b32", t0, 7, t0))
        a(valu("v_lshrrev_b32", t1, 4, V(0)))
        a(valu("v_and_b32", vT2, 6, V(0)))
        a(valu("v_xor_b32", t1, t1, vT2))
        a(valu("v_lshl_add_u32", t0, t1, 4, t0))
        a(valu("v_xor_b32", t1, 64, t0))
        a(valu("v_add_u32", vX[0], S(49), t0))
        a(valu("v_add_u32", vX[1], S(49), t1))
        a(valu("v_add_u32", vX[2], S(50), t0))
        a(valu("v_add_u32", vX[5], S(50), t1))
        a(wait(tags=['Qq0', 'K1']))
        o += qqread(0)
        a(barrier())
        o += stamp(19)
        return o
    ramp = opts['ramp']
    o += qdma(0, 3 if ramp else 1) + qdma(1, 2)
    o += stamp(17)
    if ramp:
        o += flat(dma8('K', 'Knext' if ramp == 1 else 'K1', -1))
    else:
        o += qdma(2, 3)
    if opts['otouch']:
        a(valu("v_lshlrev_b32", vT2, 7, vLANE16))
        a(Inst(f"buffer_load_dword {Ex[1][3][0]}, {vT2}, {sO}, 0 offen", 'vmem', rd=[vT2, sO], wr=[Ex[1][3][0]], tag='ot'))
    o += stamp(18)
    t0, t1 = vT0, vT1
    a(valu("v_bfe_u32", t0, V(0), 1, 3))
    a(valu("v_mul_u32_u24", t0, PIECE, t0))
    a(valu("v_and_b32", t1, 1, V(0)))
    a(valu("v_lshl_add_u32", t0, t1, 9, t0))
    a(valu("v_lshrrev_b32", t1, 4, V(0)))
    a(valu("v_lshl_add_u32", t0, t1, 4, t0))
    a(salu(f"s_mul_i32 s47, {sW}, {8 * PIECE}", rd=[sW]))
    a(salu(f"s_add_u32 s47, s47, {TILE}"))
    a(valu("v_add_u32", vX[0], S(47), t0))
    a(valu("v_add_u32", vX[1], 2 * TILE, vX[0]))
    if opts['l2pf']:
        a(salu("s_lshr_b32 s47, s2, 3"))
        a(salu("s_and_b32 s47, s47, 3"))
        a(salu("s_cmp_lt_u32 s47, 2"))
        for k in range(3):
            a(salu(f"s_cselect_b32 s{sPF.lo + k}, s{sK.lo + k}, s{sV.lo + k}", wr=[sPF[k]]))
        a(salu(f"s_mov_b32 s{sPF.lo + 3}, 0x20000", wr=[sPF[3]]))
        a(salu("s_and_b32 s47, s47, 1"))
        a(salu("s_lshl_b32 s47, s47, 2"))
        a(salu(f"s_add_u32 s47, s47, {sW}"))
        a(salu("s_lshl_b32 s47, s47, 12"))
        a(salu(f"s_add_u32 {sPFO}, s47, {2 * 32768 + 48}", wr=[sPFO]))
        a(valu("v_lshlrev_b32", vPF, 6, V(0)))
        for k in range(opts['l2pf']):
            o += touch(k == opts['l2pf'] - 1)
    a(wait(tags=['Q1']))
    for s_ in range(8):
        a(ds_read("ds_read_b128", Qx[0][s_], vX[1] if ramp else vX[0], 64 * s_))
        a(ds_read("ds_read_b128", Qx[1][s_], vX[0], TILE + 64 * s_))
    a(barrier())
    o += stamp(19)
    return o


def qdma(u, region):
    items = []
    for j in range(8):
        if j % 4 == 0:
            items += [salu(f"s_mul_i32 m0, {sW}, {8 * PIECE}", rd=[sW], wr=['m0']),
                      salu(f"s_add_u32 m0, m0, {region * TILE + j * PIECE}", wr=['m0', 'scc']),
                      salu(f"s_add_u32 s48, s49, {u * UNIS + j * 1024}", wr=[S(48)])]
        items.append(Inst(f"buffer_load_dwordx4 {vOFF[j % 4]}, {sQ}, s48 offen offset:{(j % 4) * PIECE} {opts['qflag']} lds", 'vmem',
                          rd=[vOFF[j % 4], sQ, S(48), 'm0'], wr=[], dma=True, tag=f"Q{u}", cost=4))
    return items


def qload(u, s_):
    return Inst(f"buffer_load_dwordx4 {Qx[u][s_]}, {vX[0]}, {sQ}, s{44 + u} offen offset:{64 * s_} {opts['qflag']}", 'vmem',
                rd=[vX[0], sQ], wr=[Qx[u][s_]], tag=f"Q{u}", cost=4)


NQ = opts['nq']
NDT = 16 // NQ
RB = 32 * NDT
SROW = RB + 16
SLABB = 16 * SROW
LPR = RB // 16
RPI = 64 // LPR
NST = 16 // RPI
wa, ra, ga = vX[0], vX[1], vX[2]
inv = [V(24 + 2 * u, 2) for u in range(3)]
tmpf = [V(32 + i) for i in range(32)]
pk_t = [V(72 + 2 * i, 2) for i in range(8)]
rd_t = [[V(88 + 16 * b + 4 * i, 4) for i in range(4)] for b in range(2)]
rd_all = rd_t[0] + rd_t[1]
NSLAB, SLABW, SLAB0 = 4, 4 * SLABB, 0


def slab(u, hf, n):
    p1, p2 = [], []
    buf = (n % NSLAB) * SLABB
    nr = 4 * NDT
    regs = [Ox[u][NDT * hf + i // 4][i % 4] for i in range(nr)]
    tf = tmpf[(n % (32 // nr)) * nr:][:nr]
    pk = pk_t[(n % (8 // NDT)) * NDT:][:NDT]
    for dt in range(NDT):
        src = regs[4 * dt:4 * dt + 4]
        if src[0].f == 'a':
            for i in range(4):
                p1.append(valu("v_accvgpr_read_b32", tf[4 * dt + i], src[i]))
            src = tf[4 * dt:4 * dt + 4]
        for i in range(4):
            p1.append(valu("v_mul_f32", src[i], src[i], inv[u][0]))
        p = pk[dt]
        p1.append(valu("v_cvt_pk_bf16_f32", p[0], src[0], src[1]))
        p1.append(valu("v_cvt_pk_bf16_f32", p[1], src[2], src[3]))
        w = ds_write("ds_write_b64", wa, p, 32 * dt + buf)
        w.cost = opts.get('wcost', 8)
        p1.append(w)
    allr = rd_all
    rt = allr[(n % (len(allr) // NST)) * NST:][:NST]
    for g in range(NST):
        p1.append(ds_read("ds_read_b128", rt[g], ra, g * RPI * SROW + buf))
    for g in range(NST):
        off = g * RPI * 512 + hf * RB
        st = Inst(f"buffer_store_dwordx4 {rt[g]}, {ga}, {sO}, s{52 + 2 * u + off // 4096} offen offset:{off % 4096} {opts['stflag']}", 'vmem',
                  rd=[rt[g], ga, sO], wr=[], cost=4)
        st.store_data = rt[g].regs()
        p2.append(st)
    return p1, p2


def epi_streams(streams, idx, NM, epi, fin, setup):
    END = NM
    LAT = opts['lat']
    st = []
    a = lambda x, af=6, bf=END: st.append((x, af, bf))
    t0, t1 = vX[3], vX[4]
    lg = LPR.bit_length() - 1
    a(salu(f"s_mul_i32 s48, {sW}, {SLABW}", rd=[sW]))
    a(valu("v_bfe_u32", t0, vLANE16, 4, 4))
    a(valu("v_mul_u32_u24", t0, SROW, t0))
    a(valu("v_lshrrev_b32", t1, 8, vLANE16))
    a(valu("v_lshl_add_u32", t0, t1, 3, t0))
    a(valu("v_add_u32", wa, S(48), t0))
    a(valu("v_lshrrev_b32", t1, 4 + lg, vLANE16))
    a(valu("v_mul_u32_u24", t0, SROW, t1))
    a(valu("v_and_b32", vX[5], RB - 16, vLANE16))
    a(valu("v_add3_u32", ra, t0, vX[5], S(48)))
    a(salu(f"s_mul_i32 s48, {sW}, {WAVS}", rd=[sW]))
    a(valu("v_lshl_add_u32", t0, t1, 9, vX[5]))
    a(valu("v_add_u32", ga, S(48), t0))
    for g in range(6):
        a(salu(f"s_mov_b32 s{52 + g}, {(g // 2) * UNIS + (g % 2) * 4096}"))
    for u in fin:
        af = idx[('l', u, 1)] + LAT
        a(valu("v_accvgpr_read_b32", inv[u][0], Lx[u][0]), af)
        a(valu("v_rcp_f32", inv[u][0], inv[u][0], trans=True), af)
    pend = []
    n = 0
    for hf in range(NQ):
        for u in fin:
            af = min(idx[('pv', u, NDT * hf + NDT - 1, 1)] + LAT, NM - 1)
            p1, p2 = slab(u, hf, n)
            n += 1
            cut = min(opts.get('pcut', 16), len(p1) - NST)
            for x in p1[:cut] + pend + p1[cut:]:
                a(x, af)
            pend = p2
    for x in pend:
        a(x, NM - 1)
    streams.append(st)


def epilogue():
    o = []
    o += stamp(25)
    o += stamp_out()
    o.append(label("L_end"))
    o.append(Inst("s_endpgm", 'branch'))
    return o


def analyze2(dyn):
    seq = []
    gen = 0
    for ins in dyn:
        if ins.kind == 'retag':
            gen += 1
            continue
        seq.append((ins, gen))
    wrapped = []
    for ins, g in seq:
        if ins.kind == 'vmem' and ins.tag in ('Vnew', 'Knew', 'Vcur', 'Knext'):
            w = Inst(ins.text, 'vmem', cost=ins.cost)
            w.rd, w.wr, w.dma = ins.rd, ins.wr, ins.dma
            w.pre_nop, w.pre_vm, w.pre_lgkm = ins.pre_nop, ins.pre_vm, ins.pre_lgkm
            w.tag = {'Vnew': ('V', g + 1), 'Knew': ('K', g + 1), 'Vcur': ('V', 1), 'Knext': ('K', 0)}[ins.tag]
            w.orig = ins
            wrapped.append(w)
        elif ins.kind == 'wait' and ins.wait_tags and ins.wait_tags[0] in ('Vcur', 'Knext'):
            w = wait(tags=[('V', g) if ins.wait_tags[0] == 'Vcur' else ('K', g)], lgkm0=ins.wait_lgkm0)
            w.orig = ins
            w.res_vm = None
            wrapped.append(w)
        else:
            wrapped.append(ins)
    fw.analyze(wrapped, verbose=2)
    for w in wrapped:
        o = getattr(w, 'orig', None)
        if o is not None:
            if w.kind == 'wait':
                if w.res_vm is not None:
                    o.res_vm = w.res_vm if o.res_vm is None else min(o.res_vm, w.res_vm)
            else:
                o.pre_nop = max(o.pre_nop, w.pre_nop)
                if w.pre_vm is not None:
                    o.pre_vm = w.pre_vm
                if w.pre_lgkm is not None:
                    o.pre_lgkm = w.pre_lgkm


def flip():
    return [salu(f"s_sub_u32 {sDELTA}, 0, {sDELTA}", rd=[sDELTA], wr=[sDELTA])]


def loop(name, body, n):
    if n == 1:
        code = body.insts + stamp_shift() + flip()
        return code, [Inst("", 'retag')] + code
    head = [salu(f"s_mov_b32 {sIT}, 0", wr=[sIT]), label(f"L_loop_{name}")]
    tail = stamp_shift() + flip() + [salu(f"s_add_u32 {sIT}, {sIT}, 1", rd=[sIT], wr=[sIT]),
                                     salu(f"s_cmp_lt_u32 {sIT}, {n}"),
                                     Inst(f"s_cbranch_scc1 L_loop_{name}", 'branch')]
    if body.fold:
        tail = stamp_shift() + [Inst(f"s_cbranch_scc1 L_loop_{name}", 'branch')]
        post = [salu(f"s_cmp_eq_u32 {sFLAG}, 0"), Inst("s_cbranch_scc1 L_noresc", 'branch'),
                Inst("s_call_b64 s[30:31], L_resc", 'branch'),
                salu(f"s_cmp_lt_u32 {sIT}, {n}"), Inst(f"s_cbranch_scc1 L_loop_{name}", 'branch'), label("L_noresc")]
        dyn = [head[0]]
        for it in range(n):
            dyn += [Inst("", 'retag'), head[1]] + body.insts + tail
        return head + body.insts + tail + post, dyn + post[:2]
    dyn = [head[0]]
    for it in range(n):
        dyn += [Inst("", 'retag'), head[1]] + body.insts + tail
    return head + body.insts + tail, dyn


def main():
    sk = opts['skew']
    pro = prologue()
    A3 = (0, 1, 2)
    bodies = []
    code, dyn = list(pro), list(pro)

    def emit_loop(name, b, n, pre=()):
        bodies.append(b)
        c, d = loop(name, b, n)
        code.extend(list(pre) + c)
        dyn.extend(list(pre) + d)
    if sk:
        bp = Body('p', (0, 1), (), dV=False, first=True)
        bodies.append(bp)
        tail = [qload(2, s_) for s_ in range(8)] + flip() + stamp(1) + stamp(2) + rstamp(14)
        code += bp.insts + tail
        dyn += bp.insts + tail
        if sk > 1:
            emit_loop('a', Body('a', (0, 1), (0, 1)), sk - 1)
        emit_loop('l', Body('l', A3, A3), 8 - sk, pre=[wait(tags=['Q2'])])
        emit_loop('t', Body('t', (2,), A3, dK=(sk >= 3), epi_setup=True), 1)
        rest = [(0, 1)] if sk == 2 else [(0,), (1,)] + [()] * (sk - 3)
        for k in range(sk - 1):
            j = 8 + k
            emit_loop(f'b{k}', Body(f'b{k}', (2,), (2,), nxt=(k < sk - 2), dK=(j + 3 <= 7 + sk), epi=rest[k]), 1)
        bf = Body('f', (), (2,), nxt=None, dV=False, dK=False, fin=(2,), epi=((0, 1) if sk == 1 else ()))
    elif opts['ystart']:
        by = YBody('y')
        bodies.append(by)
        tail = stamp(1) + stamp(2) + rstamp(14)
        code += by.insts + tail
        dyn += by.insts + tail
        emit_loop('l', Body('l', A3, A3), NLOOP)
    elif opts['ramp'] == 2:
        br = RBody('r')
        bodies.append(br)
        tail = stamp(1) + stamp(2) + rstamp(14)
        code += br.insts + tail
        dyn += br.insts + tail
        emit_loop('l', Body('l', A3, A3), NSTEP - 2)
    elif opts['ramp']:
        v0 = dma8('V', 'Vcur')
        ql = [(it, 1 + 2 * n, 60) for n, it in enumerate(v0)] + [([x], 24 + 2 * n, 62) for n, x in enumerate(qdma(2, 3))]
        ql[0][0][0].extra_wait = [Qx[1][7]]
        bp = Body('p', (0, 1), (), dV=False, dK=False, first=True, qload=ql, mbar=False)
        bodies.append(bp)
        tail = [salu(f"s_mov_b32 {sFLAG}, 0")] + [valu("v_mov_b32", vAL[u], 1.0) for u in (0, 1)] + flip() + stamp(20)
        code += bp.insts + tail
        dyn += bp.insts + tail
        emit_loop('a', Body('a', (0, 1), (0, 1), nxt=None, dV=False, dK=False, capo=opts['acap']), 1)
        q2 = stamp(21) + [wait(tags=['Q2'])] + stamp(22) + [ds_read("ds_read_b128", Qx[2][s_], vX[1], 64 * s_) for s_ in range(8)]
        bc = Body('c', (2,), (), dV=False, first=True, pre=q2)
        bodies.append(bc)
        tail = [salu(f"s_and_b32 {sFLAG}, {sFLAG}, 3"), valu("v_mov_b32", vAL[2], 1.0)] + flip() + stamp(23)
        code += bc.insts + tail
        dyn += [Inst("", 'retag')] + bc.insts + tail
        emit_loop('d', Body('d', (2,), (2,)), 1)
        tail = stamp(1) + stamp(2) + rstamp(14)
        code += tail
        dyn += tail
        emit_loop('l', Body('l', A3, A3), NSTEP - 2)
    else:
        k1 = dma8('K', 'Knext', -1)
        v0 = dma8('V', 'Vcur')
        sp = opts.get('dsp', 3)
        ql = [(it, min(opts['k1at'] + sp * n, 86), 88) for n, it in enumerate(k1)] + [(it, min(opts['v0at'] + sp * n, 86), 88) for n, it in enumerate(v0)]
        if opts.get('diag', 0) & 1:
            ql = ql[:1]
        if not opts['qdirect']:
            ql[0][0][0].extra_wait = [Qx[1][7]]
            q2 = [wait(tags=['Q2'])] + [ds_read("ds_read_b128", Qx[2][s_], vX[1], 64 * s_) for s_ in range(8)]
            pos = [k for k, it in enumerate(ql) if it[1] >= opts['q2at']]
            pos = pos[0] if pos else len(ql)
            ql = ql[:pos] + [(q2, opts['q2at'], 62)] + ql[pos:]
        bp = Body('p', A3, (), dV=False, dK=not (opts.get('diag', 0) & 2), first=True, qkg=[(0, 1), (2,)] if not opts.get('p3', 0) else None, qload=ql)
        bodies.append(bp)
        tail = [salu(f"s_mov_b32 {sFLAG}, 0")] + [valu("v_mov_b32", vAL[u], 1.0) for u in A3] + flip() + stamp(1) + stamp(2) + rstamp(14)
        code += bp.insts + tail
        dyn += bp.insts + tail
        emit_loop('l', Body('l', A3, A3), NLOOP)
    if opts['zend']:
        bf = ZBody('z')
    elif not sk:
        bf = Body('f', (), A3, nxt=None, dV=False, dK=False, fin=A3, epi_setup=True)
        for i in bf.insts:
            if i.kind == 'wait' and i.wait_tags:
                i.wait_tags = None
                i.vm0 = True
                break
    bodies.append(bf)
    bf.insts += stamp(10) + rstamp(15)
    epi = epilogue()
    code += bf.insts + epi
    dyn += [Inst("", 'retag')] + bf.insts + epi
    analyze2(dyn)
    analyze2(dyn)
    rare = []
    for b in bodies:
        rare += b.rare()
    rare += resc_common()
    fw.analyze(rare, verbose=0)
    hdr = open('standalone__gqa_softmax__near_ridge.s.ref').read().split('\n')
    hdr = [l for l in hdr if l.startswith(';') and '@launch' not in l and 'Override' not in l and 'grid=ceil' not in l]
    txt = "\n".join(hdr) + f"\n; @launch grid=(256,1,1) block=(256,1,1) lds={LDS_BYTES}\n"
    txt += f""".amdgcn_target "amdgcn-amd-amdhsa--gfx950"
.text
.globl {KNAME}
.p2align 8
.type {KNAME},@function
{KNAME}:
"""
    txt += emit(code) + "\n"
    txt += emit(rare) + "\n"
    txt += f""".section .rodata,"a"
.p2align 6
.amdhsa_kernel {KNAME}
  .amdhsa_next_free_vgpr 512
  .amdhsa_next_free_sgpr 102
  .amdhsa_accum_offset 256
  .amdhsa_group_segment_fixed_size 0
  .amdhsa_kernarg_size 48
  .amdhsa_user_sgpr_count 2
  .amdhsa_user_sgpr_kernarg_segment_ptr 1
  .amdhsa_system_sgpr_workgroup_id_x 1
.end_amdhsa_kernel
"""
    open(sys.argv[1], 'w').write(txt)


main()
```
